```python
import torch

def _softmax(x, axis=-1):
    return torch.softmax(x, dim=axis)
def _gelu(x):
    return torch.nn.functional.gelu(x, approximate="tanh")
def _silu(x):
    return torch.nn.functional.silu(x)
def _sigmoid(x):
    return torch.sigmoid(x)
def _layernorm(x, axis=-1, eps=1e-5):
    m = x.mean(dim=axis, keepdim=True)
    v = x.var(dim=axis, keepdim=True, unbiased=False)
    return (x - m) / torch.sqrt(v + eps)
def _scatter_add(tgt, idx, src, axis=0):
    return tgt.clone().index_add_(axis, idx, src)
def _segment_sum(src, seg, n):
    out = torch.zeros((n,) + src.shape[1:], dtype=src.dtype)
    return out.index_add_(0, seg, src)
def _pad(x, pw):
    flat = tuple(v for pair in reversed(pw) for v in pair)
    return torch.nn.functional.pad(x, flat)

kernel_name = 'concat_heads__spectral_fnet__linear_kernel_hedgehog__prompt'

def setup_inputs():

    _w = (lambda a: (lambda t: t.to(torch.bfloat16) if t.is_floating_point() else t)(torch.as_tensor(a)))
    def _A_setup():
        B, S, D = 1, 2048, 448
        ns = torch.arange(S)[:, None] * torch.arange(S)[None, :]
        nd = torch.arange(D)[:, None] * torch.arange(D)[None, :]
        Ws_re = torch.cos(-2.0 * torch.pi * ns / S).to(float)
        Ws_im = torch.sin(-2.0 * torch.pi * ns / S).to(float)
        Wd_re = torch.cos(-2.0 * torch.pi * nd / D).to(float)
        Wd_im = torch.sin(-2.0 * torch.pi * nd / D).to(float)
        return {
            "x": _w((lambda *s: torch.randn(*s, dtype=torch.bfloat16) * 0.05)(B, S, D)),
            "dft_seq_re": _w(Ws_re),
            "dft_seq_im": _w(Ws_im),
            "dft_hid_re": _w(Wd_re),
            "dft_hid_im": _w(Wd_im),
        }
    _A_in = _A_setup()

    def _B_setup():
        B, S, D, H = 1, 2048, 448, 16
        Dh = D // H
        return {
            "x": _w((lambda *s: torch.randn(*s, dtype=torch.bfloat16) * 0.2)(B, S, D)),
            "wqkv": _w((lambda *s: torch.randn(*s, dtype=torch.bfloat16) * 1.6)(D, 3 * D)),
            "w_phi": _w((lambda *s: torch.randn(*s, dtype=torch.bfloat16) * 1.6)(H, Dh, Dh) * (Dh ** -0.5)),
            "wo": _w((lambda *s: torch.randn(*s, dtype=torch.bfloat16) * 0.8)(D, D)),
        }
    _B_in = _B_setup()

    return {
        "A_x": _A_in["x"],
        "A_dft_seq_re": _A_in["dft_seq_re"],
        "A_dft_seq_im": _A_in["dft_seq_im"],
        "A_dft_hid_re": _A_in["dft_hid_re"],
        "A_dft_hid_im": _A_in["dft_hid_im"],
        "B_x": _B_in["x"],
        "B_wqkv": _B_in["wqkv"],
        "B_w_phi": _B_in["w_phi"],
        "B_wo": _B_in["wo"],
    }

def reference(A_x, A_dft_seq_re, A_dft_seq_im, A_dft_hid_re, A_dft_hid_im, B_x, B_wqkv, B_w_phi, B_wo):
    def _A_ref(x, dft_seq_re, dft_seq_im, dft_hid_re, dft_hid_im):
        a = torch.einsum("bsd,ed->bse", x, dft_hid_re)
        b = torch.einsum("bsd,ed->bse", x, dft_hid_im)
        y = torch.einsum("ts,bse->bte", dft_seq_re, a) - torch.einsum("ts,bse->bte", dft_seq_im, b)
        return y

    def _B_ref(x, wqkv, w_phi, wo):
        B, S, D = x.shape
        H = 16; Dh = D // H
        qkv = (lambda x, *d: x.permute(*d))((x @ wqkv).reshape(B, S, 3, H, Dh), 2, 0, 3, 1, 4)
        q, k, v = qkv[0], qkv[1], qkv[2]
        pq = torch.einsum("bhsd,hdf->bhsf", q, w_phi)
        pk = torch.einsum("bhsd,hdf->bhsf", k, w_phi)
        phi_q = torch.concatenate([_softmax(pq, axis=-1), _softmax(-pq, axis=-1)], axis=-1)
        phi_k = torch.concatenate([_softmax(pk, axis=-1), _softmax(-pk, axis=-1)], axis=-1)
        kv = torch.einsum("bhsf,bhsd->bhfd", phi_k, v)
        z  = torch.einsum("bhsf->bhf", phi_k)
        num = torch.einsum("bhqf,bhfd->bhqd", phi_q, kv)
        den = torch.einsum("bhqf,bhf->bhq", phi_q, z)[..., None] + 1e-6
        o = num / den
        return (lambda x, *d: x.permute(*d))(o, 0, 2, 1, 3).reshape(B, S, D) @ wo

    a = _A_ref(A_x, A_dft_seq_re, A_dft_seq_im, A_dft_hid_re, A_dft_hid_im)
    b = _B_ref(B_x, B_wqkv, B_w_phi, B_wo)
    return torch.concatenate([a, b], axis=-1)
```

```python
NAME = "concat_heads__spectral_fnet__linear_kernel_hedgehog__prompt"
HEADER = """; Kernarg layout (96 bytes, ptrs only, base s[0:1]):
"""
class Asm:
    def __init__(self):
        self.l = []
    def __call__(self, s):
        for x in s.split("\n"):
            self.l.append(x)
    def text(self):
        return "\n".join(self.l) + "\n"

def kernel_desc(name, vgpr, sgpr=102, accum=None):
    if accum is None:
        accum = min(256, (vgpr + 3) // 4 * 4)
    return f""".amdhsa_kernel {name}
  .amdhsa_next_free_vgpr {vgpr}
  .amdhsa_next_free_sgpr {sgpr}
  .amdhsa_accum_offset {accum}
  .amdhsa_group_segment_fixed_size 0
  .amdhsa_kernarg_size 96
  .amdhsa_user_sgpr_count 2
  .amdhsa_user_sgpr_kernarg_segment_ptr 1
  .amdhsa_system_sgpr_workgroup_id_x 1
  .amdhsa_float_denorm_mode_32 3
.end_amdhsa_kernel
"""

def make_file(launches, bodies, single=False):
    out = HEADER
    if single:
        k, g, b, lds = launches[0]
        out += f"; @launch grid=({g},1,1) block=({b},1,1) lds={lds}\n"
    else:
        for k, g, b, lds in launches:
            out += f"; @launch kernel={k} grid=({g},1,1) block=({b},1,1) lds={lds}\n"
    out += '.amdgcn_target "amdgcn-amd-amdhsa--gfx950"\n.text\n'
    for name, (text, vgpr, sgpr, accum) in bodies.items():
        out += f".globl {name}\n.p2align 8\n.type {name},@function\n{name}:\n{text}\n"
    out += '.section .rodata,"a"\n'
    for name, (text, vgpr, sgpr, accum) in bodies.items():
        out += ".p2align 6\n" + kernel_desc(name, vgpr, sgpr, accum)
    return out
```

```python
import re
REG = re.compile(r'(?<![\w\[])([vsa])(\d+)(?![\w\[:])|([vsa])\[(\d+):(\d+)\]')
def regs(tok):
    out = set()
    for m in REG.finditer(tok):
        if m.group(1):
            out.add((m.group(1), int(m.group(2))))
        else:
            for i in range(int(m.group(4)), int(m.group(5)) + 1):
                out.add((m.group(3), i))
    if re.search(r'\bvcc(_lo|_hi)?\b', tok): out.add(('x', 'vcc'))
    if re.search(r'\bexec(_lo|_hi)?\b', tok): out.add(('x', 'exec'))
    if re.search(r'\bm0\b', tok): out.add(('x', 'm0'))
    return out
def split_ops(s):
    ops, depth, cur = [], 0, ''
    for ch in s:
        if ch in '[(': depth += 1
        if ch in '])': depth -= 1
        if ch == ',' and depth == 0:
            ops.append(cur.strip()); cur = ''
        else:
            cur += ch
    if cur.strip(): ops.append(cur.strip())
    return ops
TRANS = ('v_exp_f32','v_log_f32','v_rcp_f32','v_rsq_f32','v_sqrt_f32','v_sin_f32','v_cos_f32','v_rcp_iflag_f32')
class Ins:
    def __init__(self, text):
        self.text = text
        t = text.split(';')[0].strip()
        self.label = t.endswith(':')
        self.directive = t.startswith('.')
        self.empty = (t == '')
        self.mn = ''
        self.w = set(); self.r = set(); self.ops = []
        if self.label or self.directive or self.empty: return
        p = t.split(None, 1)
        mn = p[0]; self.mn = re.sub(r'_e(32|64)$', '', mn); mn = self.mn
        ops = split_ops(p[1]) if len(p) > 1 else []
        self.ops = ops
        self.valu = mn.startswith('v_')
        self.mfma = mn.startswith('v_mfma')
        self.salu = mn.startswith('s_')
        self.vmem = mn.startswith(('buffer_', 'global_', 'flat_'))
        self.ds = mn.startswith('ds_')
        self.trans = mn in TRANS
        self.ldsdma = self.vmem and re.search(r'\blds\b', t) is not None
        allr = [regs(o) for o in ops]
        if self.vmem:
            if 'store' in mn or self.ldsdma or ('atomic' in mn and 'sc0' not in t):
                for x in allr: self.r |= x
            else:
                self.w |= allr[0]
                for x in allr[1:]: self.r |= x
            if self.ldsdma: self.r.add(('x', 'm0'))
            self.data = allr[0] if mn.startswith('buffer_store') else (allr[1] if mn.startswith('global_store') else set())
            self.wide = ('store' in mn) and ('x3' in mn or 'x4' in mn)
        elif self.ds:
            if mn.startswith(('ds_write', 'ds_add_u32', 'ds_or_b32', 'ds_max')) and 'rtn' not in mn:
                for x in allr: self.r |= x
            else:
                self.w |= allr[0]
                for x in allr[1:]: self.r |= x
                if 'd16' in mn: self.r |= allr[0]
        elif self.valu:
            if mn.startswith('v_permlane') and 'swap' in mn:
                self.w |= allr[0] | allr[1]; self.r |= allr[0] | allr[1]
            elif mn.startswith('v_cmp'):
                self.w |= allr[0]
                for x in allr[1:]: self.r |= x
            elif mn in ('v_add_co_u32', 'v_sub_co_u32', 'v_addc_co_u32'):
                self.w |= allr[0] | allr[1]
                for x in allr[2:]: self.r |= x
            elif mn == 'v_nop':
                pass
            else:
                self.w |= allr[0]
                for x in allr[1:]: self.r |= x
                if mn.startswith(('v_fmac', 'v_dot2c', 'v_writelane', 'v_pk_fmac')): self.r |= allr[0]
        elif self.salu:
            if mn.startswith(('s_cmp', 's_cbranch', 's_branch', 's_waitcnt', 's_nop', 's_barrier', 's_endpgm', 's_sleep', 's_setprio', 's_bitcmp')):
                for x in allr: self.r |= x
            else:
                if allr: self.w |= allr[0]
                for x in allr[1:]: self.r |= x
                if 'saveexec' in mn: self.w.add(('x', 'exec')); self.r.add(('x', 'exec'))
        if self.mfma:
            self.passes = 8 if '32x32x16' in mn else 4
            self.D = allr[0]; self.A = allr[1]; self.B = allr[2]; self.C = allr[3] if len(allr) > 3 else set()
    def states(self):
        if self.mn == 's_nop': return int(self.ops[0], 0) + 1
        return 1
def vg(s): return {x for x in s if x[0] in 'va'}
def sg(s): return {x for x in s if x[0] == 's' or x == ('x', 'vcc')}
def need(p, c):
    n = 0
    if p.mfma:
        big = 12 if p.passes == 8 else 8
        if c.mfma:
            if p.D & (c.A | c.B): n = max(n, big)
            if p.D & c.C:
                if not (p.D == c.C and p.passes == c.passes): n = max(n, 10 if p.passes == 8 else 6)
            if (p.D & c.D) and not (p.D & c.C): n = max(n, big)
        elif c.valu:
            if p.D & (c.r | c.w): n = max(n, big)
            if p.C & c.w: n = max(n, 7 if p.passes == 8 else 3)
        elif c.vmem or c.ds:
            if p.D & (c.r | c.w): n = max(n, big)
    elif p.valu:
        pv = vg(p.w); ps = sg(p.w)
        if c.mfma and pv & (c.A | c.B | c.C): n = max(n, 2)
        if c.valu and c.mn.startswith('v_permlane') and pv & c.r: n = max(n, 2)
        if c.valu and ('dpp' in c.text or 'row_' in c.text or 'quad_perm' in c.text) and pv & c.r: n = max(n, 2)
        if c.valu and c.mn.startswith(('v_readlane', 'v_readfirstlane')) and pv & c.r: n = max(n, 1)
        if p.trans and c.valu and pv & c.r: n = max(n, 1)
        if c.valu and ps & c.r: n = max(n, 4 if c.mn.startswith(('v_readlane', 'v_writelane')) else 2)
        if c.vmem and ps & c.r: n = max(n, 5)
        if c.salu and ps & c.r: n = max(n, 1)
        if ('op_sel' in p.text or 'sdwa' in p.text) and c.valu and pv & (c.r | c.w): n = max(n, 1)
    elif p.salu:
        if ('x', 'm0') in p.w and c.mn and (c.vmem and c.ldsdma): n = max(n, 1)
    elif p.vmem:
        if getattr(p, 'wide', False) and (p.data & c.w): n = max(n, 2)
    return n
def fix(text, lookback=24):
    lines = text.split('\n')
    out = []
    nins = 0
    for ln in lines:
        c = Ins(ln)
        if c.empty or c.directive:
            out.append(c); continue
        if c.label:
            out.append(c); continue
        dist = 0; req = 0
        for p in reversed(out):
            if p.empty or p.directive or p.label: continue
            if p.mn in ('s_branch', 's_endpgm', 's_setpc_b64'): break
            k = need(p, c) - dist
            if k > req: req = k
            dist += p.states()
            if dist >= lookback: break
        while req > 0:
            k = min(req, 16)
            out.append(Ins(f's_nop {k-1}')); req -= k; nins += 1
        out.append(c)
    return '\n'.join(i.text for i in out)
```

```python
import sys, math, struct
from asmlib import *
import hz

OPT = dict(stamps=0, mimic=1)
for x in sys.argv[2:]:
    k, v = x.split('='); OPT[k] = int(v)

SLOT = 24576
XP = 122880
UT = XP
SM = 155648
C_B1, C_B2, C_B3, C_WOR, C_WQ, C_WO, C_FREE, C_XP, C_A1D, C_U, NONCE = [4*i for i in range(11)]
PHI = SM + 256
KVF = SM + 4096
WQ = 2*SLOT
STG = WQ + 28672
KVX = 4*SLOT
OB = 0
LDS_BYTES = 163840
W_KVP = 0; W_O = 0x100000; W_U = 0x300000; W_FL = 0x500000
W_F1 = W_FL; W_F2 = W_FL + 0x1000; W_FU = W_FL + 0x2000
W_ST = 0x600000
S_BX, S_W, S_AX, S_WO, S_WS, S_OUT, S_PHI, S_FR, S_FI, S_DBG = [32 + 4*i for i in range(10)]
sXCD, sI, sH, sRB, sWV, sROT, sBUD, sNON = 72, 73, 74, 75, 76, 77, 78, 79
sT0, sT1, sT2, sT3, sT4, sT5 = 80, 81, 82, 83, 84, 85
sL, sNL, sMASK = 86, 87, 88
sTAB = 6
ST0 = 90
def srd(s): return f"s[{s}:{s+3}]"

class VM:
    def __init__(self, a): self.a = a; self.q = []
    def issue(self, tag, n=1): self.q += [tag]*n
    def wait(self, tag):
        idx = max(i for i, t in enumerate(self.q) if t == tag)
        n = len(self.q) - 1 - idx
        assert n <= 63
        self.a(f"s_waitcnt vmcnt({n})")
        self.q = self.q[idx+1:]
    def drain(self):
        self.a("s_waitcnt vmcnt(0)"); self.q = []

lab = [0]
def L(p):
    lab[0] += 1
    return f"L{p}_{lab[0]}"

nst = {'B': 0, 'A': 0}
def stamp(a, role):
    if not OPT['stamps']: return
    i = nst[role]; nst[role] += 1
    a(f"s_memrealtime s[{ST0}:{ST0+1}]")
    a("s_waitcnt lgkmcnt(0)")
    a(f"v_writelane_b32 v{STV[role]}, s{ST0}, {i}")
STV = {'B': 15, 'A': 15}
NSTAMP = 16
def stamps_out(a, role):
    if not OPT['stamps']: return
    lx = L("st")
    a(f"s_cmp_lg_u32 s{sWV}, 0\ns_cbranch_scc1 {lx}")
    a(f"v_mbcnt_lo_u32_b32 v1, -1, 0\nv_mbcnt_hi_u32_b32 v1, -1, v1\nv_lshlrev_b32 v1, 3, v1")
    a(f"s_mul_i32 s{sT0}, s2, {2*NSTAMP*8}\ns_add_u32 s{sT0}, s{sT0}, {W_ST + (NSTAMP*8 if role == 'A' else 0)}")
    a(f"v_mov_b32 v2, v{STV[role]}\nv_mov_b32 v3, 0")
    a(f"s_mov_b64 exec, 0xffff")
    a(f"buffer_store_dwordx2 v[2:3], v1, {srd(S_WS)}, s{sT0} offen")
    a(f"{lx}:")

def signal(a, cnt, vSM, vOne):
    a("s_mov_b64 exec, 1")
    a(f"ds_add_u32 v{vSM}, v{vOne} offset:{cnt}")
    a("s_mov_b64 exec, -1")
def lwait(a, cnt, vSM, vT, n=4):
    l = L("w")
    a(f"{l}:")
    a(f"ds_read_b32 v{vT}, v{vSM} offset:{cnt}")
    a(f"s_sub_u32 s{sBUD}, s{sBUD}, 1\ns_cbranch_scc1 LEND")
    a("s_waitcnt lgkmcnt(0)")
    a(f"v_readfirstlane_b32 s{sT0}, v{vT}")
    a(f"s_cmp_ge_u32 s{sT0}, {n}\ns_cbranch_scc0 {l}")

def mfma32(a, d, A, B, c=None):
    cs = f"v[{c}:{c+15}]" if c is not None else "0"
    a(f"v_mfma_f32_32x32x16_bf16 v[{d}:{d+15}], v[{A}:{A+3}], v[{B}:{B+3}], {cs}")
def mfma16(a, d, A, B, c=None):
    cs = f"v[{c}:{c+3}]" if c is not None else "0"
    a(f"v_mfma_f32_16x16x32_bf16 v[{d}:{d+3}], v[{A}:{A+3}], v[{B}:{B+3}], {cs}")

def dmap(m):
    if m in (11, 15): return 28
    if m in (27, 31): return 29
    return m - (m > 11) - (m > 15) - (m > 27)

def bf16(x):
    u = struct.unpack('<I', struct.pack('<f', x))[0]
    return ((u + 0x7FFF + ((u >> 16) & 1)) >> 16) & 0xFFFF
def f32(x): return struct.unpack('<I', struct.pack('<f', x))[0]

T_ASEL = 0; T_WOR = 1024; T_DM = 2048; T_M1 = 2304; T_SEED = T_M1 + 2048
def tables():
    w = []
    for l in range(64):
        m, g = l & 15, l >> 4
        vals = [0x3F80 if m == (j & 3) + 8*(j >> 2) + 4*(g & 1) else 0 for j in range(8)]
        w += [vals[2*k] | (vals[2*k+1] << 16) for k in range(4)]
    for l in range(64):
        G = l >> 4; hh = G >> 1; r4 = (l & 15) >> 2
        for i in range(2):
            for sec in range(2):
                m = 16*i + 8*sec + 4*hh + r4
                d = dmap(m)
                w.append(d if d < 28 else 27)
    for l in range(64): w.append(dmap(l & 31))
    for i in range(2):
        for l in range(64):
            j, hh = l & 31, l >> 5
            c, comp = j >> 1, j & 1
            vals = []
            for jj in range(8):
                s1 = 16*i + (jj & 3) + 8*(jj >> 2) + 4*hh
                if comp == 0: v = math.cos(2*math.pi*((c*s1) % 32)/32)
                elif c: v = -math.sin(2*math.pi*((c*s1) % 32)/32)
                else: v = math.cos(math.pi*s1)
                if abs(v) < 1e-9: v = 0.0
                vals.append(bf16(v))
            w += [vals[2*k] | (vals[2*k+1] << 16) for k in range(4)]
    for q in range(4):
        for wv in range(4):
            for l in range(64):
                e = 64*q + 32*(wv & 1) + (l & 31); d0 = 224*(l >> 5)
                def F(d):
                    ang = 2*math.pi*((e*d) % 448)/448
                    v = math.cos(ang) if (wv >> 1) == 0 else -math.sin(ang)
                    return 0.0 if abs(v) < 1e-12 else v
                K = 2*math.cos(2*math.pi*e/448)
                w += [f32(K), f32(F(d0-2)), f32(F(d0-1)), 0]
    out = []
    for i in range(0, len(w), 8):
        out.append(".long " + ",".join("0x%x" % x for x in w[i:i+8]))
    return "\n".join(out), 4*len(w)

def prologue(a):
    a("s_load_dwordx16 s[8:23], s[0:1], 0")
    a("s_load_dwordx8 s[24:31], s[0:1], 64")
    a("s_cmp_ge_u32 s2, 256\ns_cbranch_scc1 LEND")
    if OPT['stamps']:
        a(f"s_memrealtime s[{ST0+2}:{ST0+3}]")
    a("v_lshrrev_b32 v1, 6, v0\nv_and_b32 v0, 63, v0")
    a(f"s_and_b32 s{sXCD}, s2, 7\ns_lshr_b32 s{sI}, s2, 3")
    a(f"v_readfirstlane_b32 s{sWV}, v1")
    a(f"s_and_b32 s{sH}, s{sI}, 15\ns_lshr_b32 s{sT0}, s{sI}, 4")
    a(f"s_lshl_b32 s{sRB}, s{sXCD}, 1\ns_add_u32 s{sRB}, s{sRB}, s{sT0}")
    a(f"s_mov_b32 s{sBUD}, 0x200000")
    a(f"s_cmp_lt_u32 s{sWV}, 4\ns_cbranch_scc1 LB")
    a(f"s_sub_u32 s{sWV}, s{sWV}, 4")

def mk_srd(a, s, p, nbytes):
    a(f"s_mov_b32 s{s}, s{p}\ns_mov_b32 s{s+1}, s{p+1}\ns_mov_b32 s{s+2}, {nbytes}\ns_mov_b32 s{s+3}, 0x20000")

def table_base(a):
    a(f"s_getpc_b64 s[{sTAB}:{sTAB+1}]")
    l = L("pc")
    a(f"{l}:")
    a(f"s_add_u32 s{sTAB}, s{sTAB}, LTAB-{l}\ns_addc_u32 s{sTAB+1}, s{sTAB+1}, 0")

def gen_A(a):
    vm = VM(a)
    vX = [2, 3, 4, 5]; vW = [6, 7]; vXP = 8; vL16 = 9; vSM = 10; vOne = 11; vT = 12; vNon = 13; vT2 = 14
    sXO, sWO_, sC = sT1, sT2, sT3
    sXB, sWB = 89, 4
    sS2, sQ = 5, 3
    a(f"s_mul_i32 s{sROT}, s{sT0}, 3\ns_add_u32 s{sROT}, s{sROT}, s{sH}")
    for _ in range(2):
        a(f"s_sub_u32 s{sT0}, s{sROT}, 7\ns_cmp_ge_u32 s{sROT}, 7\ns_cselect_b32 s{sROT}, s{sT0}, s{sROT}")
    a(f"v_lshrrev_b32 v{vT}, 3, v0\nv_mul_u32_u24 v{vX[0]}, 896, v{vT}")
    a(f"v_and_b32 v{vT2}, 7, v0\nv_lshrrev_b32 v1, 4, v0\nv_xor_b32 v{vT2}, v{vT2}, v1\nv_lshlrev_b32 v{vT2}, 4, v{vT2}")
    a(f"v_mul_u32_u24 v{vXP}, {896}, v{vT}\nv_lshlrev_b32 v{vXP}, 6, v{vXP}\nv_add_u32 v{vXP}, v{vXP}, v{vT2}")
    a(f"v_add_u32 v{vX[0]}, v{vX[0]}, v{vT2}")
    a(f"v_xor_b32 v{vX[1]}, 64, v{vX[0]}\nv_add_u32 v{vX[2]}, {2*6144}, v{vX[0]}\nv_add_u32 v{vX[3]}, {3*6144}, v{vX[1]}\nv_add_u32 v{vX[1]}, 6144, v{vX[1]}")
    a(f"v_lshrrev_b32 v{vT}, 2, v0\nv_mul_u32_u24 v{vW[0]}, 2688, v{vT}\nv_and_b32 v{vT}, 3, v0\nv_lshl_add_u32 v{vW[0]}, v{vT}, 4, v{vW[0]}")
    a(f"v_add_u32 v{vW[1]}, {16*2688-1024}, v{vW[0]}")
    a(f"v_lshlrev_b32 v{vL16}, 4, v0")
    a(f"s_lshl_b32 s{sXB}, s{sRB}, 2\ns_add_u32 s{sXB}, s{sXB}, s{sWV}\ns_mul_i32 s{sXB}, s{sXB}, {32*896}")
    a(f"s_and_b32 s{sT0}, s{sWV}, 1\ns_mul_i32 s{sWB}, s{sT0}, {32*2688}\ns_lshr_b32 s{sT0}, s{sWV}, 1\ns_add_u32 s{sT0}, s{sT0}, 1\ns_mul_i32 s{sT0}, s{sT0}, 896")
    a(f"s_add_u32 s{sWB}, s{sWB}, s{sT0}\ns_mul_i32 s{sT0}, s{sH}, 56\ns_add_u32 s{sWB}, s{sWB}, s{sT0}")
    a(f"s_mov_b32 s{sC}, s{sROT}")
    a(f"s_lshl_b32 s{sT4}, s{sWV}, 12\ns_lshl_b32 s{sT5}, s{sWV}, 11\ns_add_u32 s{sT5}, s{sT5}, 16384")
    a("s_waitcnt lgkmcnt(0)")
    mk_srd(a, S_BX, 18, 2048*896); mk_srd(a, S_W, 20, 448*2688)
    def chunk(i):
        slot = (i % 5)*SLOT
        a(f"s_lshl_b32 s{sXO}, s{sC}, 7\ns_add_u32 s{sXO}, s{sXO}, s{sXB}")
        a(f"s_add_u32 m0, s{sT4}, {slot}")
        a(f"s_mul_i32 s{sWO_}, s{sC}, {64*2688}")
        for k in range(4):
            a(f"buffer_load_dwordx4 v{vX[k]}, {srd(S_BX)}, s{sXO} offen offset:{1024*k} lds")
        a(f"s_add_u32 m0, s{sT5}, {slot}")
        a(f"s_add_u32 s{sWO_}, s{sWO_}, s{sWB}")
        for k in range(2):
            a(f"buffer_load_dwordx4 v{vW[k]}, {srd(S_W)}, s{sWO_} offen offset:{1024*k} lds")
        a(f"s_add_u32 s{sC}, s{sC}, 1\ns_cmp_eq_u32 s{sC}, 7\ns_cselect_b32 s{sC}, 0, s{sC}")
        vm.issue(f"c{i}", 6)
    chunk(0)
    mk_srd(a, S_PHI, 22, 16*1568)
    a(f"s_and_b32 s{sT0}, s{sWV}, 1\ns_lshl_b32 s{sT0}, s{sT0}, 10\ns_add_u32 m0, s{sT0}, {PHI}")
    a(f"s_mul_i32 s{sXO}, s{sH}, 1568\ns_add_u32 s{sXO}, s{sXO}, s{sT0}")
    a(f"buffer_load_dwordx4 v{vL16}, {srd(S_PHI)}, s{sXO} offen lds")
    vm.issue("c0")
    for i in range(1, 5): chunk(i)
    mk_srd(a, S_AX, 8, 2048*896); mk_srd(a, S_WO, 24, 448*896); mk_srd(a, S_WS, 30, 0x10000000); mk_srd(a, S_OUT, 26, 2048*1792)
    mk_srd(a, S_FR, 10, 2048*4096); mk_srd(a, S_FI, 12, 2048*4096); mk_srd(a, S_DBG, 28, 256)
    a(f"v_mov_b32 v{vSM}, {SM}\nv_mov_b32 v{vOne}, 1\nv_mov_b32 v{vT}, 0")
    a(f"v_lshl_add_u32 v1, v0, 2, v{vSM}")
    a(f"ds_write_b32 v1, v{vT}")
    if OPT['stamps']:
        a(f"v_mov_b32 v{STV['A']}, 0\nv_writelane_b32 v{STV['A']}, s{ST0+2}, 0"); nst['A'] = 1
    ln = L("non")
    a(f"s_or_b32 s{sT0}, s2, s{sWV}\ns_cmp_lg_u32 s{sT0}, 0\ns_cbranch_scc1 {ln}")
    a(f"s_memrealtime s[{ST0}:{ST0+1}]\ns_waitcnt lgkmcnt(0)\ns_or_b32 s{sT0}, s{ST0}, 1\nv_mov_b32 v1, s{sT0}")
    a(f"s_mov_b64 exec, 1\nbuffer_store_dword v1, v{vT}, {srd(S_DBG)}, 0 offen sc1\ns_mov_b64 exec, -1")
    a(f"s_waitcnt vmcnt(24)\ns_branch {ln}b")
    a(f"{ln}:")
    vm.wait("c0")
    a(f"{ln}b:")
    a("s_waitcnt lgkmcnt(0)\ns_barrier")
    table_base(a)
    a(f"s_lshr_b32 s{sT0}, s{sI}, 2\ns_lshl_b32 s{sS2}, s{sXCD}, 3\ns_add_u32 s{sS2}, s{sS2}, s{sT0}\ns_and_b32 s{sQ}, s{sI}, 3")
    a("s_waitcnt vmcnt(18)"); vm.q = vm.q[6:]
    a("s_barrier")
    chunk(5)
    vm.wait("c2"); a("s_barrier")
    a(f"buffer_load_dword v{vNon}, v{vT}, {srd(S_DBG)}, 0 offen sc1"); vm.issue("c6")
    chunk(6)
    a(f"s_and_b32 s{sT0}, s{sWV}, 1\ns_lshl_b32 s{sT0}, s{sT0}, 6\nv_xor_b32 v{vXP}, s{sT0}, v{vXP}")
    a(f"s_lshl_b32 s{sXO}, s{sWV}, 9\ns_add_u32 s{sXO}, s{sXO}, s{sS2}\ns_mul_i32 s{sXO}, s{sXO}, 896")
    a(f"s_lshl_b32 s{sT0}, s{sWV}, 10\ns_add_u32 m0, s{sT0}, {XP}")
    for lc in range(7):
        a(f"buffer_load_dwordx4 v{vXP}, {srd(S_AX)}, s{sXO} offen lds")
        if lc < 6: a(f"s_add_u32 m0, m0, 4096\ns_add_u32 s{sXO}, s{sXO}, 128")
    vm.issue("xp", 7)
    a(f"s_lshl_b32 s{sT0}, s{sQ}, 2\ns_add_u32 s{sT0}, s{sT0}, s{sWV}\ns_lshl_b32 s{sT0}, s{sT0}, 10\nv_add_u32 v1, s{sT0}, v{vL16}\nv_add_u32 v1, {T_SEED}, v1")
    a(f"global_load_dwordx4 v[16:19], v1, s[{sTAB}:{sTAB+1}]")
    a(f"global_load_dwordx4 v[20:23], v{vL16}, s[{sTAB}:{sTAB+1}] offset:{T_M1}")
    a(f"global_load_dwordx4 v[24:27], v{vL16}, s[{sTAB}:{sTAB+1}] offset:{T_M1+1024}")
    vm.issue("xp", 3)
    vm.wait("c3"); a("s_barrier")
    vm.wait("c4"); a("s_barrier")
    a(f"s_mul_i32 s{sWB}, s{sWV}, {16*2688}\ns_mul_i32 s{sT0}, s{sH}, 56\ns_add_u32 s{sWB}, s{sWB}, s{sT0}")
    a(f"s_lshl_b32 s{sT0}, s{sWV}, 10\ns_add_u32 m0, s{sT0}, {WQ}")
    for i in range(7):
        a(f"s_mul_i32 s{sWO_}, s{sC}, {64*2688}\ns_add_u32 s{sWO_}, s{sWO_}, s{sWB}")
        a(f"buffer_load_dwordx4 v{vW[0]}, {srd(S_W)}, s{sWO_} offen lds")
        if i < 6:
            a(f"s_add_u32 m0, m0, 4096")
            a(f"s_add_u32 s{sC}, s{sC}, 1\ns_cmp_eq_u32 s{sC}, 7\ns_cselect_b32 s{sC}, 0, s{sC}")
    vm.issue("wq", 7)
    sCL, sQ2, sTQ, sOFF = 89, 4, sT4, sT5
    a(f"s_mov_b32 s{sCL}, s{sRB}\ns_lshr_b32 s{sQ2}, s{sI}, 2\ns_and_b32 s{sQ2}, s{sQ2}, 3\ns_and_b32 s{sTQ}, s{sI}, 3")
    a(f"s_cmp_lt_u32 s{sTQ}, 2\ns_cselect_b32 s{sOFF}, 16, -992\ns_cmp_eq_u32 s{sCL}, 0\ns_cselect_b32 s{sOFF}, s{sOFF}, s{sCL}")
    vTT = 28
    a(f"s_lshl_b32 s{sT0}, s{sTQ}, 9\ns_add_u32 s{sT0}, s{sT0}, s{sOFF}")
    a(f"v_and_b32 v1, 15, v0\nv_lshlrev_b32 v1, 5, v1\nv_add_u32 v{vTT}, s{sT0}, v1")
    a(f"v_lshlrev_b32 v1, 12, v{vTT}\nv_lshrrev_b32 v{vT2}, 4, v0\nv_lshl_add_u32 v1, v{vT2}, 4, v1")
    FR, FI = 32, 40
    for ks in range(2):
        a(f"buffer_load_dwordx4 v[{FR+4*ks}:{FR+4*ks+3}], v1, {srd(S_FR)}, 0 offen offset:{64*ks}")
        a(f"buffer_load_dwordx4 v[{FI+4*ks}:{FI+4*ks+3}], v1, {srd(S_FI)}, 0 offen offset:{64*ks}")
    vm.issue("fs", 4)
    vm.wait("c5"); a("s_barrier")
    vm.wait("c6")
    lr = L("nr")
    a(f"{lr}:\nv_readfirstlane_b32 s{sNON}, v{vNon}\ns_cmp_lg_u32 s{sNON}, 0\ns_cbranch_scc1 {lr}x")
    a(f"s_sub_u32 s{sBUD}, s{sBUD}, 64\ns_cbranch_scc1 {lr}x")
    a(f"buffer_load_dword v{vNon}, v{vT}, {srd(S_DBG)}, 0 offen sc1\ns_waitcnt vmcnt(0)\ns_branch {lr}")
    a(f"{lr}x:")
    a(f"ds_write_b32 v{vSM}, v{vNon} offset:{NONCE}\ns_waitcnt lgkmcnt(0)")
    a("s_barrier")
    stamp(a, 'A')
    aXP = 48
    a(f"v_and_b32 v1, 31, v0\nv_lshrrev_b32 v{vT2}, 5, v0\nv_bfe_u32 v{vT}, v0, 1, 3\nv_lshlrev_b32 v{vT2}, 2, v{vT2}\nv_xor_b32 v{vT}, v{vT}, v{vT2}")
    a(f"v_lshlrev_b32 v1, 7, v1\nv_lshl_add_u32 v1, v{vT}, 4, v1\nv_add_u32 v1, {XP}, v1")
    a(f"v_mul_u32_u24 v{vT2}, {3*1024}, v{vT2}\nv_add_u32 v1, v1, v{vT2}")
    a(f"v_lshrrev_b32 v{vT2}, 5, v0\nv_lshlrev_b32 v{vT2}, 12, v{vT2}")
    for k in range(8):
        a(f"v_xor_b32 v{aXP+k}, {16*k}, v1")
        if k >= 4: a(f"v_add_u32 v{aXP+k}, v{aXP+k}, v{vT2}")
    vm.wait("xp"); signal(a, C_XP, vSM, vOne)
    vm.wait("wq"); signal(a, C_WQ, vSM, vOne)
    lwait(a, C_XP, vSM, vT)
    stamp(a, 'A')
    ACC, GEN, PK, XR = 64, 80, 96, 104
    K = 16
    NR = 8
    for i in range(NR):
        a(f"ds_read_b128 v[{XR+4*i}:{XR+4*i+3}], v{aXP+(i&7)} offset:{(i>>3)*4096}")
    p2, p1 = 17, 18
    for i in range(28):
        g = GEN + 8*(i & 1)
        for j in range(8):
            a(f"v_fma_f32 v{g+j}, v{K}, v{p1}, -v{p2}")
            p2, p1 = p1, g+j
        pk = PK + 4*(i & 1)
        for j in range(4):
            a(f"v_cvt_pk_bf16_f32 v{pk+j}, v{g+2*j}, v{g+2*j+1}")
        a(f"s_waitcnt lgkmcnt({min(NR-1, 27-i)})")
        mfma32(a, ACC, XR+4*(i % NR), pk, ACC if i else None)
        if i + NR < 28:
            n = i + NR
            a(f"ds_read_b128 v[{XR+4*(n%NR)}:{XR+4*(n%NR)+3}], v{aXP+(n&7)} offset:{(n>>3)*4096}")
    aSW, aSR, vUO = 56, 60, 61
    a(f"s_lshl_b32 s{sT0}, s{sWV}, 11\ns_add_u32 s{sT0}, s{sT0}, {STG}")
    a(f"v_and_b32 v1, 31, v0\nv_lshlrev_b32 v1, 6, v1\nv_bfe_u32 v{vT}, v0, 1, 2\nv_lshl_add_u32 v1, v{vT}, 4, v1\nv_lshrrev_b32 v{vT}, 5, v0\nv_lshl_add_u32 v1, v{vT}, 3, v1\nv_add_u32 v1, s{sT0}, v1")
    for k in range(4): a(f"v_xor_b32 v{aSW+k}, {16*k}, v1")
    a(f"v_bfe_u32 v{vT}, v0, 3, 2\nv_and_b32 v1, 3, v0\nv_xor_b32 v{vT}, v{vT}, v1\nv_lshrrev_b32 v{aSR}, 2, v0\nv_lshlrev_b32 v{aSR}, 6, v{aSR}\nv_lshl_add_u32 v{aSR}, v{vT}, 4, v{aSR}\nv_add_u32 v{aSR}, s{sT0}, v{aSR}")
    for j in range(8):
        a(f"v_cvt_pk_bf16_f32 v{GEN+j}, v{ACC+2*j}, v{ACC+2*j+1}")
    mfma32(a, ACC, GEN, 20, None)
    mfma32(a, ACC, GEN+4, 24, ACC)
    a(f"s_bfe_u32 s{sT0}, s{sS2}, 0x10001\ns_bfe_u32 s{sT1}, s{sS2}, 0x10003\ns_lshl_b32 s{sT1}, s{sT1}, 1\ns_or_b32 s{sT0}, s{sT0}, s{sT1}\ns_lshl_b32 s{sT0}, s{sT0}, 5")
    a(f"s_and_b32 s{sT1}, s{sWV}, 1\ns_lshl_b32 s{sT1}, s{sT1}, 6\ns_xor_b32 s{sT0}, s{sT0}, s{sT1}")
    a(f"v_lshlrev_b32 v1, 4, v1\nv_xor_b32 v1, s{sT0}, v1\nv_lshrrev_b32 v{vT}, 3, v0\nv_lshl_add_u32 v1, v{vT}, 17, v1\nv_bfe_u32 v{vT}, v0, 2, 1\nv_lshl_add_u32 v{vUO}, v{vT}, 13, v1")
    a(f"s_lshl_b32 s{sT0}, s{sQ}, 15\ns_lshr_b32 s{sT1}, s{sWV}, 1\ns_lshl_b32 s{sT2}, s{sT1}, 14\ns_add_u32 s{sT0}, s{sT0}, s{sT2}\ns_lshl_b32 s{sT2}, s{sS2}, 7\ns_add_u32 s{sT0}, s{sT0}, s{sT2}\ns_add_u32 s{sT2}, s{sT0}, {W_U}\ns_add_u32 s{sT3}, s{sT2}, 0x100000")
    for j in range(8):
        a(f"v_cvt_pk_bf16_f32 v{GEN+j}, v{ACC+2*j}, v{ACC+2*j+1}")
    for k in range(4):
        a(f"ds_write_b64 v{aSW+k}, v[{GEN+2*k}:{GEN+2*k+1}]")
    a("s_waitcnt lgkmcnt(0)")
    a(f"ds_read_b128 v[{XR}:{XR+3}], v{aSR}\nds_read_b128 v[{XR+4}:{XR+7}], v{aSR} offset:1024")
    a(f"s_lshl_b32 s{sT0}, s{sQ}, 1\ns_add_u32 s{sT0}, s{sT0}, s{sT1}\ns_lshl_b32 s{sT0}, s{sT0}, 9\ns_lshl_b32 s{sT1}, s{sS2}, 3\ns_add_u32 s{sT0}, s{sT0}, s{sT1}\ns_and_b32 s{sT1}, s{sWV}, 1\ns_lshl_b32 s{sT1}, s{sT1}, 2\ns_add_u32 s{sT0}, s{sT0}, s{sT1}\ns_add_u32 s{sT1}, s{sT0}, {W_FU}")
    a("s_waitcnt lgkmcnt(1)")
    a(f"buffer_store_dwordx4 v[{XR}:{XR+3}], v{vUO}, {srd(S_WS)}, s{sT2} offen sc1")
    a("s_waitcnt lgkmcnt(0)")
    a(f"buffer_store_dwordx4 v[{XR+4}:{XR+7}], v{vUO}, {srd(S_WS)}, s{sT3} offen sc1")
    signal(a, C_A1D, vSM, vOne)
    a(f"v_mov_b32 v{vT}, 0")
    vm.drain()
    a(f"s_mov_b64 exec, 1\nbuffer_store_dword v{vNon}, v{vT}, {srd(S_WS)}, s{sT1} offen sc1\ns_mov_b64 exec, -1")
    vm.issue("fl")
    stamp(a, 'A')
    BP1, BQ0, BQ1, BP0 = 136, 144, 152, 160
    a(f"s_mov_b32 s{sT0}, 0x80008000")
    lg = L("cls")
    a(f"s_cmp_lg_u32 s{sCL}, 0\ns_cbranch_scc1 {lg}g")
    a(f"s_cmp_lt_u32 s{sTQ}, 2\ns_cbranch_scc1 {lg}h")
    for j in range(8): a(f"v_mov_b32 v{BP0+j}, v{FR+j}\nv_mov_b32 v{BP1+j}, 0\nv_mov_b32 v{BQ0+j}, v{FI+j}\nv_mov_b32 v{BQ1+j}, 0")
    a(f"s_branch {lg}x\n{lg}h:")
    for j in range(8): a(f"v_mov_b32 v{BP0+j}, 0\nv_mov_b32 v{BP1+j}, v{FR+j}\nv_mov_b32 v{BQ0+j}, 0\nv_mov_b32 v{BQ1+j}, v{FI+j}")
    a(f"s_branch {lg}x\n{lg}g:")
    for j in range(8): a(f"v_mov_b32 v{BP0+j}, v{FR+j}\nv_xor_b32 v{BP1+j}, s{sT0}, v{FI+j}\nv_mov_b32 v{BQ0+j}, v{FI+j}\nv_mov_b32 v{BQ1+j}, v{FR+j}")
    a(f"{lg}x:")
    vWO = [56, 57, 58, 59]
    a(f"v_lshrrev_b32 v1, 4, v0\nv_lshlrev_b32 v{vT}, 2, v1\nv_and_b32 v{vT2}, 15, v0\nv_xor_b32 v{vT}, v{vT}, v{vT2}\nv_mul_u32_u24 v1, 896, v1\nv_lshl_add_u32 v{vWO[0]}, v{vT}, 4, v1")
    for j in range(1, 4): a(f"v_add_u32 v{vWO[j]}, {j*(4*896-1024)}, v{vWO[0]}")
    a(f"s_mul_i32 s{sT1}, s{sWV}, {112*896}\ns_and_b32 s{sT2}, s{sI}, 3\ns_lshl_b32 s{sT2}, s{sT2}, 8\ns_add_u32 s{sT1}, s{sT1}, s{sT2}")
    a(f"s_mul_i32 s{sT2}, s{sWV}, {112*256}")
    lwait(a, C_A1D, vSM, vT)
    lwait(a, C_FREE, vSM, vT)
    a(f"s_mov_b32 m0, s{sT2}")
    for g in range(7):
        for j in range(4):
            a(f"buffer_load_dwordx4 v{vWO[j]}, {srd(S_WO)}, s{sT1} offen offset:{1024*j} lds")
        if g < 6: a(f"s_add_u32 m0, m0, 4096\ns_add_u32 s{sT1}, s{sT1}, {16*896}")
    vm.issue("wo", 28)
    stamp(a, 'A')
    vm.wait("wo"); signal(a, C_WO, vSM, vOne)
    stamp(a, 'A')
    a(f"s_lshl_b32 s{sT1}, s{sQ2}, 1\ns_lshr_b32 s{sT2}, s{sWV}, 1\ns_add_u32 s{sT1}, s{sT1}, s{sT2}\ns_lshl_b32 s{sT1}, s{sT1}, 9\ns_add_u32 s{sT1}, s{sT1}, {W_FU}")
    a(f"v_lshlrev_b32 v1, 3, v0")
    lp = L("pu")
    a(f"{lp}:\nbuffer_load_dwordx2 v[62:63], v1, {srd(S_WS)}, s{sT1} offen sc1")
    a(f"s_sub_u32 s{sBUD}, s{sBUD}, 4\ns_cbranch_scc1 LEND")
    a(f"s_waitcnt vmcnt(0)\nv_xor_b32 v62, v62, v{vNon}\nv_xor_b32 v63, v63, v{vNon}\nv_or_b32 v62, v62, v63\nv_cmp_ne_u32 vcc, 0, v62\ns_cbranch_vccnz {lp}")
    stamp(a, 'A')
    UL = 168
    a(f"s_lshl_b32 s{sT1}, s{sCL}, 2\ns_add_u32 s{sT1}, s{sT1}, s{sQ2}\ns_lshl_b32 s{sT1}, s{sT1}, 2\ns_add_u32 s{sT1}, s{sT1}, s{sWV}\ns_lshl_b32 s{sT1}, s{sT1}, 13\ns_add_u32 s{sT1}, s{sT1}, {W_U}\ns_add_u32 s{sT2}, s{sT1}, 4096")
    for k in range(8):
        a(f"buffer_load_dwordx4 v[{UL+4*k}:{UL+4*k+3}], v{vL16}, {srd(S_WS)}, s{sT1 if k < 4 else sT2} offen offset:{1024*(k&3)} sc1")
    a(f"s_lshl_b32 s{sT1}, s{sWV}, 13\ns_add_u32 s{sT1}, s{sT1}, {UT}\nv_add_u32 v62, s{sT1}, v{vL16}")
    aU = 63
    a(f"v_lshrrev_b32 v1, 4, v0\nv_bfe_u32 v{vT}, v0, 2, 2\nv_lshl_add_u32 v{vT2}, v1, 3, v{vT}\nv_lshlrev_b32 v{aU}, 7, v{vT2}")
    a(f"v_and_b32 v1, 1, v1\nv_lshlrev_b32 v1, 1, v1\nv_lshrrev_b32 v{vT}, 1, v{vT}\nv_or_b32 v1, v1, v{vT}\nv_xor_b32 v1, s{sWV}, v1\nv_lshl_add_u32 v{aU}, v1, 5, v{aU}")
    a(f"v_and_b32 v1, 3, v0\nv_lshl_add_u32 v{aU}, v1, 3, v{aU}\nv_add_u32 v{aU}, {UT}, v{aU}")
    for k in range(8):
        a(f"s_waitcnt vmcnt({7-k})\nds_write_b128 v62, v[{UL+4*k}:{UL+4*k+3}] offset:{1024*k}")
    a("s_waitcnt lgkmcnt(0)"); signal(a, C_U, vSM, vOne)
    vE0, vD1, vD2, vM1, vM2 = 48, 49, 50, 51, 52
    a(f"s_lshl_b32 s{sT1}, s{sQ2}, 6\ns_lshl_b32 s{sT2}, s{sWV}, 4\ns_add_u32 s{sT1}, s{sT1}, s{sT2}\nv_lshrrev_b32 v1, 4, v0\nv_lshl_add_u32 v{vE0}, v1, 2, s{sT1}")
    a(f"s_movk_i32 s{sT2}, 1792\nv_mul_lo_u32 v1, v{vTT}, s{sT2}\nv_sub_u32 v{vT}, {2048*1792}, v1")
    a(f"v_lshlrev_b32 v{vT2}, 1, v{vE0}\nv_add_u32 v{vD1}, v1, v{vT2}\nv_add_u32 v{vD2}, v{vT}, v{vT2}")
    a(f"v_sub_u32 v{vT2}, {2*445}, v{vT2}\nv_add_u32 v{vM1}, v1, v{vT2}\nv_add_u32 v{vM2}, v{vT}, v{vT2}")
    lwait(a, C_U, vSM, vT)
    stamp(a, 'A')
    AF = 168
    n = 0
    for bc in range(4):
        for ks in range(2):
            for sec in range(2):
                r = AF + 8*bc + 4*ks + 2*sec
                a(f"ds_read_b64_tr_b16 v[{r}:{r+1}], v{aU} offset:{bc*8192+ks*4096+sec*512}")
    PA, QA, ZA = 64, 68, 72
    a("s_waitcnt lgkmcnt(12)"); mfma16(a, PA, AF, BP0); mfma16(a, PA, AF+4, BP0+4, PA)
    a("s_waitcnt lgkmcnt(8)"); mfma16(a, PA, AF+8, BP1, PA); mfma16(a, PA, AF+12, BP1+4, PA)
    a("s_waitcnt lgkmcnt(4)"); mfma16(a, QA, AF+16, BQ0); mfma16(a, QA, AF+20, BQ0+4, QA)
    a("s_waitcnt lgkmcnt(0)"); mfma16(a, QA, AF+24, BQ1, QA); mfma16(a, QA, AF+28, BQ1+4, QA)
    mF, mZ, mE = 8, 10, 12
    a(f"v_cmp_ge_u32 s[{mF}:{mF+1}], 220, v{vE0}\nv_cmp_lt_u32 vcc, 0, v{vE0}\ns_and_b64 s[{mZ}:{mZ+1}], s[{mF}:{mF+1}], vcc\nv_cmp_eq_u32 s[{mE}:{mE+1}], 224, v{vE0}".replace("v_cmp_ge_u32 s[8:9], 220,", "s_movk_i32 s14, 220\ns_movk_i32 s15, 224\nv_cmp_ge_u32 s[8:9], s14,").replace("v_cmp_eq_u32 s[12:13], 224,", "v_cmp_eq_u32 s[12:13], s15,"))
    def stores(dirA, mirA, D, Mv, em):
        t = 100
        a(f"v_cvt_pk_bf16_f32 v{t}, v{D}, v{D+1}\nv_cvt_pk_bf16_f32 v{t+1}, v{D+2}, v{D+3}")
        a(f"v_cvt_pk_bf16_f32 v{t+2}, v{Mv+3}, v{Mv}\nv_cvt_pk_bf16_f32 v{t+3}, v{Mv+2}, v{Mv+1}")
        def ex(m):
            if em is None: a(f"s_mov_b64 exec, s[{m}:{m+1}]")
            else: a(f"s_and_b64 exec, s[{m}:{m+1}], s[{em}:{em+1}]")
        ex(mF)
        a(f"buffer_store_dwordx2 v[{t}:{t+1}], v{dirA}, {srd(S_OUT)}, 0 offen")
        a(f"buffer_store_short v{t+2}, v{mirA}, {srd(S_OUT)}, 0 offen")
        a(f"buffer_store_dword v{t+3}, v{mirA}, {srd(S_OUT)}, 0 offen offset:2")
        ex(mZ)
        a(f"buffer_store_short_d16_hi v{t+2}, v{mirA}, {srd(S_OUT)}, 0 offen offset:6")
        ex(mE)
        a(f"buffer_store_short v{t}, v{dirA}, {srd(S_OUT)}, 0 offen")
        a("s_mov_b64 exec, -1")
    MM, PP = 76, 80
    for r in range(4): a(f"v_sub_f32 v{MM+r}, v{PA+r}, v{QA+r}\nv_add_f32 v{PP+r}, v{PA+r}, v{QA+r}")
    stores(vD1, vM1, MM, PP, None)
    a("s_nop 1")
    stores(vD2, vM2, PP, MM, None)
    lz = L("z")
    a(f"s_or_b32 s{sT0}, s{sCL}, s{sTQ}\ns_cmp_lg_u32 s{sT0}, 0\ns_cbranch_scc1 {lz}")
    for j in range(4): a(f"v_mov_b32 v{BP0+j}, 0x3f803f80")
    mfma16(a, ZA, AF, BP0); mfma16(a, ZA, AF+4, BP0, ZA)
    a(f"v_lshlrev_b32 v{vD1}, 1, v{vE0}\nv_sub_u32 v{vM1}, {2*445}, v{vD1}")
    a(f"s_mov_b32 s14, 0x00010001\ns_mov_b32 s15, 0x00010001")
    stores(vD1, vM1, ZA, ZA, 14)
    a(f"{lz}:")
    stamp(a, 'A')
    stamps_out(a, 'A')
    a("s_endpgm")

def softmax(a, P, E, T, PHp, PHm):
    idx = [0,1,2,3,4,5,6,8,9,10,11,12,13,14]
    if OPT['mimic']:
        for k in range(7): a(f"v_cvt_pk_bf16_f32 v{E+k}, v{P+idx[2*k]}, v{P+idx[2*k+1]}")
        for k in range(7): a(f"v_lshlrev_b32 v{P+idx[2*k]}, 16, v{E+k}\nv_and_b32 v{P+idx[2*k+1]}, s{sMASK}, v{E+k}")
    mx, mn, t1, t2 = T, T+1, T+2, T+3
    a(f"v_max3_f32 v{mx}, v{P+idx[0]}, v{P+idx[1]}, v{P+idx[2]}\nv_min3_f32 v{mn}, v{P+idx[0]}, v{P+idx[1]}, v{P+idx[2]}")
    for k in range(3, 13, 2):
        a(f"v_max3_f32 v{mx}, v{mx}, v{P+idx[k]}, v{P+idx[k+1]}\nv_min3_f32 v{mn}, v{mn}, v{P+idx[k]}, v{P+idx[k+1]}")
    a(f"v_max_f32 v{mx}, v{mx}, v{P+idx[13]}\nv_min_f32 v{mn}, v{mn}, v{P+idx[13]}")
    a(f"v_mov_b32 v{t1}, v{mx}\nv_mov_b32 v{t2}, v{mn}")
    a(f"v_permlane32_swap_b32 v{mx}, v{t1}\nv_permlane32_swap_b32 v{mn}, v{t2}")
    a(f"v_max_f32 v{mx}, v{mx}, v{t1}\nv_min_f32 v{mn}, v{mn}, v{t2}")
    a(f"v_mul_f32 v{mx}, s{sNL}, v{mx}\nv_mul_f32 v{mn}, s{sL}, v{mn}")
    for i in idx: a(f"v_fma_f32 v{E+i}, v{P+i}, s{sL}, v{mx}\nv_fma_f32 v{P+i}, v{P+i}, s{sNL}, v{mn}")
    for i in idx: a(f"v_exp_f32 v{E+i}, v{E+i}\nv_exp_f32 v{P+i}, v{P+i}")
    sp, sm = T+4, T+5
    a(f"v_add_f32 v{sp}, v{E+idx[0]}, v{E+idx[1]}\nv_add_f32 v{sm}, v{P+idx[0]}, v{P+idx[1]}")
    for i in idx[2:]: a(f"v_add_f32 v{sp}, v{sp}, v{E+i}\nv_add_f32 v{sm}, v{sm}, v{P+i}")
    a(f"v_mov_b32 v{t1}, v{sp}\nv_mov_b32 v{t2}, v{sm}")
    a(f"v_permlane32_swap_b32 v{sp}, v{t1}\nv_permlane32_swap_b32 v{sm}, v{t2}")
    a(f"v_add_f32 v{sp}, v{sp}, v{t1}\nv_add_f32 v{sm}, v{sm}, v{t2}")
    a(f"v_rcp_f32 v{sp}, v{sp}\nv_rcp_f32 v{sm}, v{sm}")
    for i in idx: a(f"v_mul_f32 v{E+i}, v{E+i}, v{sp}\nv_mul_f32 v{P+i}, v{P+i}, v{sm}")
    for k in range(8):
        hi_e = f"v{E+2*k+1}" if (2*k+1) not in (7, 15) else "0"
        hi_p = f"v{P+2*k+1}" if (2*k+1) not in (7, 15) else "0"
        a(f"v_cvt_pk_bf16_f32 v{PHp+k}, v{E+2*k}, {hi_e}\nv_cvt_pk_bf16_f32 v{PHm+k}, v{P+2*k}, {hi_p}")

def gen_B(a):
    vm = VM(a)
    a("LB:")
    a("s_setprio 2")
    a(f"s_getpc_b64 s[{sTAB}:{sTAB+1}]")
    l = L("pc"); a(f"{l}:")
    a(f"s_sub_u32 s4, s{sTAB}, {l}-{NAME}_kernel\ns_subb_u32 s5, s{sTAB+1}, 0")
    a(f"s_add_u32 s{sTAB}, s{sTAB}, LTAB-{l}\ns_addc_u32 s{sTAB+1}, s{sTAB+1}, 0")
    a(f"s_lshl_b32 s{sT0}, s{sWV}, 13\nv_lshl_add_u32 v1, v0, 7, s{sT0}\nv_min_u32 v1, LTAB-{NAME}_kernel+{T_SEED}-4, v1")
    a(f"global_load_dword v2, v1, s[4:5]")
    vL16, vSM, vOne, vT, vT2, vNon = 9, 10, 11, 12, 13, 14
    aX0, aW0 = 2, 6
    AK, AV, WF, PHIF, X = 16, 32, 48, 80, 128
    ASEL, WOR, DM = 96, 100, 104
    a(f"v_lshlrev_b32 v{vL16}, 4, v0\nv_lshlrev_b32 v8, 2, v0")
    a(f"global_load_dwordx4 v[{ASEL}:{ASEL+3}], v{vL16}, s[{sTAB}:{sTAB+1}] offset:{T_ASEL}")
    a(f"global_load_dwordx4 v[{WOR}:{WOR+3}], v{vL16}, s[{sTAB}:{sTAB+1}] offset:{T_WOR}")
    a(f"global_load_dword v{DM}, v8, s[{sTAB}:{sTAB+1}] offset:{T_DM}")
    if OPT['stamps']:
        a(f"s_waitcnt lgkmcnt(0)\nv_mov_b32 v{STV['B']}, 0\nv_writelane_b32 v{STV['B']}, s{ST0+2}, 0"); nst['B'] = 1
    a(f"v_mov_b32 v{vSM}, {SM}\nv_mov_b32 v{vOne}, 1")
    a(f"s_mov_b32 s{sL}, 0x3fb8aa3b\ns_mov_b32 s{sNL}, 0xbfb8aa3b\ns_mov_b32 s{sMASK}, 0xffff0000")
    vR, vHH = 7, 8
    a(f"v_and_b32 v{vR}, 31, v0\nv_lshrrev_b32 v{vHH}, 5, v0\nv_bfe_u32 v{vT}, v0, 1, 3")
    a(f"s_lshl_b32 s{sT0}, s{sWV}, 12")
    a(f"v_xor_b32 v{vT2}, v{vT}, v{vHH}\nv_lshlrev_b32 v{vT2}, 4, v{vT2}\nv_lshl_add_u32 v{vT2}, v{vR}, 7, v{vT2}\nv_add_u32 v{vT2}, s{sT0}, v{vT2}")
    a("s_waitcnt vmcnt(3)")
    for ks in range(4): a(f"v_xor_b32 v{aX0+ks}, {32*ks}, v{vT2}")
    aKW, aKA, aKB = 112, 116, 118
    a(f"s_lshl_b32 s{sT0}, s{sWV}, 11\ns_add_u32 s{sT0}, s{sT0}, {KVX}")
    a(f"v_xor_b32 v{vT2}, v{vT}, v{vHH}\nv_lshlrev_b32 v{vT2}, 3, v{vT2}\nv_lshl_add_u32 v{vT2}, v{vR}, 6, v{vT2}\nv_add_u32 v{vT2}, s{sT0}, v{vT2}")
    for k in range(4): a(f"v_xor_b32 v{aKW+k}, {16*k}, v{vT2}")
    vG, vR4, vCC = 122, 123, 124
    a(f"v_lshrrev_b32 v{vG}, 4, v0\nv_bfe_u32 v{vR4}, v0, 2, 2\nv_and_b32 v{vCC}, 3, v0")
    a(f"v_lshl_add_u32 v{vT2}, v{vHH}, 3, v{vR4}\nv_lshlrev_b32 v{vT2}, 6, v{vT2}\nv_lshl_add_u32 v{vT2}, v{vCC}, 3, v{vT2}\nv_and_b32 v{vT}, 1, v{vG}\nv_lshl_add_u32 v{aW0}, v{vT}, 5, v{vT2}")
    a(f"v_lshlrev_b32 v{vT}, 2, v{vT}\nv_lshrrev_b32 v{vT2}, 1, v{vR4}\nv_add_u32 v{vT}, v{vT}, v{vT2}\nv_xor_b32 v{vT}, v{vT}, v{vCC}\nv_lshlrev_b32 v{vT}, 3, v{vT}")
    a(f"v_lshl_add_u32 v{vT2}, v{vG}, 3, v{vR4}\nv_lshl_add_u32 v{vT}, v{vT2}, 6, v{vT}")
    a(f"v_add_u32 v{aKB}, {KVX+16384}, v{vT}\nv_add_u32 v{aKB+1}, 256, v{aKB}\nv_xor_b32 v{aKB+1}, 16, v{aKB+1}\nv_xor_b32 v{aKB+2}, 32, v{aKB}\nv_xor_b32 v{aKB+3}, 32, v{aKB+1}")
    a(f"s_and_b32 s{sT0}, s{sWV}, 1\ns_lshl_b32 s{sT0}, s{sT0}, 5\ns_lshr_b32 s{sT1}, s{sWV}, 1\ns_lshl_b32 s{sT1}, s{sT1}, 13\ns_sub_u32 s{sT1}, 16384, s{sT1}")
    for sec in range(2): a(f"v_xor_b32 v{aKA+sec}, s{sT0}, v{aKB+sec}\nv_subrev_u32 v{aKA+sec}, s{sT1}, v{aKA+sec}")
    vPS, vPL, vKFW, vKFR = 125, 126, 127, 105
    a(f"v_and_b32 v{vT}, 15, v0\nv_lshlrev_b32 v{vT}, 4, v{vT}\nv_and_b32 v{vT2}, 1, v{vG}\nv_lshl_add_u32 v{vT}, v{vT2}, 9, v{vT}")
    a(f"v_lshl_add_u32 v{vPS}, v{vHH}, 8, v{vT}\nv_lshl_add_u32 v{vPL}, v{vHH}, 12, v{vT}\nv_lshl_add_u32 v{vKFW}, v{vHH}, 3, v{vT}")
    a(f"s_lshl_b32 s{sT0}, s{sWV}, 10\ns_add_u32 s{sT0}, s{sT0}, {KVF}\nv_add_u32 v{vKFW}, s{sT0}, v{vKFW}")
    a("s_waitcnt vmcnt(0) lgkmcnt(0)")
    mk_srd(a, S_WS, 30, 0x10000000); mk_srd(a, S_OUT, 26, 2048*1792)
    a(f"v_lshlrev_b32 v{vKFR}, 4, v{DM}\nv_lshl_add_u32 v{vKFR}, v{vHH}, 9, v{vKFR}\nv_add_u32 v{vKFR}, {KVF}, v{vKFR}")
    a(f"v_and_b32 v{vT2}, 1, v{vG}\nv_lshlrev_b32 v{vT2}, 5, v{vT2}\nv_lshl_add_u32 v{vT2}, v{vCC}, 3, v{vT2}")
    for k in range(4):
        a(f"v_and_b32 v{vT}, 3, v{WOR+k}\nv_xor_b32 v{vT}, s{sWV}, v{vT}\nv_lshl_add_u32 v{vT}, v{vT}, 6, v{vT2}\nv_lshl_add_u32 v{WOR+k}, v{WOR+k}, 8, v{vT}")
    aPH = 106
    a(f"v_min_u32 v{vT}, 27, v{DM}\nv_mul_u32_u24 v{vT2}, 224, v{vHH}\nv_lshl_add_u32 v{aPH}, v{vT}, 1, v{vT2}\nv_add_u32 v{aPH}, {PHI}, v{aPH}")
    AT = 88
    for c in range(7):
        slot = (c % 5)*SLOT
        for ks in range(4): a(f"v_add_u32 v{AT+ks}, {slot}, v{aX0+ks}")
        a(f"v_add_u32 v{AT+4}, {slot+16384}, v{aW0}")
        a("s_barrier")
        for ks in range(4):
            a(f"ds_read_b128 v[{X+16*c+4*ks}:{X+16*c+4*ks+3}], v{AT+ks}")
            for sg in range(2):
                for sec in range(2):
                    r = WF + 8*ks + 4*sg + 2*sec
                    a(f"ds_read_b64_tr_b16 v[{r}:{r+1}], v{AT+4} offset:{sg*4096+ks*1024+sec*256}")
        for ks in range(4):
            a(f"s_waitcnt lgkmcnt({15-5*ks})")
            first = (c == 0 and ks == 0)
            mfma32(a, AK, WF+8*ks, X+16*c+4*ks, None if first else AK)
            mfma32(a, AV, WF+8*ks+4, X+16*c+4*ks, None if first else AV)
        if c == 0:
            stamp(a, 'B')
            for i in range(2):
                for j in range(8):
                    d = 16*i + (j & 3) + 8*(j >> 2)
                    a(f"ds_read_u16 v{240+8*i+j}, v{aPH} offset:{d*56}")
            a("s_waitcnt lgkmcnt(0)")
            for k in range(8): a(f"v_lshl_or_b32 v{PHIF+k}, v{241+2*k}, 16, v{240+2*k}")
            a(f"s_mov_b32 exec_lo, 0\nv_mov_b32 v{PHIF+6}, 0\nv_mov_b32 v{PHIF+7}, 0\ns_mov_b32 exec_lo, -1")
    a(f"ds_read_b32 v{vNon}, v{vSM} offset:{NONCE}")
    stamp(a, 'B')
    KB = 48; VB = 56; E = 64; T = 88; PHp = 48; PHm = 56
    for j in range(8): a(f"v_cvt_pk_bf16_f32 v{KB+j}, v{AK+2*j}, v{AK+2*j+1}")
    mfma32(a, AK, PHIF, KB, None); mfma32(a, AK, PHIF+4, KB+4, AK)
    for j in range(8): a(f"v_cvt_pk_bf16_f32 v{VB+j}, v{AV+2*j}, v{AV+2*j+1}")
    a(f"s_mov_b32 exec_lo, 0\nv_mov_b32 v{VB+6}, 0x3f80\nv_mov_b32 v{VB+7}, 0\ns_mov_b32 exec_lo, -1")
    for k in range(4): a(f"ds_write_b64 v{aKW+k}, v[{VB+2*k}:{VB+2*k+1}] offset:16384")
    softmax(a, AK, E, T, 32, 40)
    for k in range(4):
        a(f"ds_write_b64 v{aKW+k}, v[{32+2*k}:{33+2*k}]\nds_write_b64 v{aKW+k}, v[{40+2*k}:{41+2*k}] offset:8192")
    a("s_waitcnt lgkmcnt(0)"); signal(a, C_B1, vSM, vOne)
    a(f"s_lshl_b32 s{sT2}, s{sH}, 4\ns_add_u32 s{sT2}, s{sT2}, s{sRB}\ns_lshl_b32 s{sT2}, s{sT2}, 2\ns_add_u32 s{sT2}, s{sT2}, s{sWV}\ns_lshl_b32 s{sT2}, s{sT2}, 10")
    a(f"s_lshl_b32 s{sT3}, s{sH}, 2\ns_add_u32 s{sT3}, s{sT3}, s{sWV}\ns_lshl_b32 s{sT3}, s{sT3}, 6\ns_add_u32 s{sT3}, s{sT3}, {W_F1}")
    a(f"s_lshl_b32 s{sT4}, s{sRB}, 2\ns_add_u32 s{sT4}, s{sT4}, s{sT3}")
    lwait(a, C_B1, vSM, vT)
    stamp(a, 'B')
    FA, FB = 32, 48
    for ks in range(4):
        for sec in range(2): a(f"ds_read_b64_tr_b16 v[{FA+4*ks+2*sec}:{FA+4*ks+2*sec+1}], v{aKA+sec} offset:{2048*ks}")
        for dt in range(2):
            for sec in range(2):
                r = FB + 16*dt + 4*ks + 2*sec
                a(f"ds_read_b64_tr_b16 v[{r}:{r+1}], v{aKB+2*dt+sec} offset:{2048*ks}")
        if ks >= 2:
            k2 = ks - 2
            a(f"s_waitcnt lgkmcnt(12)")
            for dt in range(2): mfma16(a, 16+4*dt, FA+4*k2, FB+16*dt+4*k2, 16+4*dt if k2 else None)
    for k2 in (2, 3):
        a(f"s_waitcnt lgkmcnt({6*(3-k2)})")
        for dt in range(2): mfma16(a, 16+4*dt, FA+4*k2, FB+16*dt+4*k2, 16+4*dt)
    a(f"v_mov_b32 v{vT}, 0")
    a(f"v_cvt_pk_bf16_f32 v24, v16, v17\nv_cvt_pk_bf16_f32 v25, v18, v19\nv_cvt_pk_bf16_f32 v26, v20, v21\nv_cvt_pk_bf16_f32 v27, v22, v23")
    a("v_permlane32_swap_b32 v24, v26\nv_permlane32_swap_b32 v25, v27")
    a(f"buffer_store_dwordx4 v[24:27], v{vPS}, {srd(S_WS)}, s{sT2} offen sc1")
    lwait(a, C_WQ, vSM, vT2)
    a("s_waitcnt vmcnt(0)")
    a(f"s_mov_b64 exec, 1\nbuffer_store_dword v{vNon}, v{vT}, {srd(S_WS)}, s{sT4} offen sc1\ns_mov_b64 exec, -1")
    stamp(a, 'B')
    a(f"v_add_u32 v{AT}, {WQ}, v{aW0}")
    AQ = 32
    NB = 6
    def wq_read(n):
        r = WF + 4*(n % 8)
        for sec in range(2): a(f"ds_read_b64_tr_b16 v[{r+2*sec}:{r+2*sec+1}], v{AT} offset:{n*1024+sec*256}")
    for n in range(NB): wq_read(n)
    for n in range(28):
        a(f"s_waitcnt lgkmcnt({2*min(NB-1, 27-n)})")
        mfma32(a, AQ, WF+4*(n % 8), X+4*n, AQ if n else None)
        if n + NB < 28: wq_read(n + NB)
    PHQp, PHQm = 107, 80
    PHQp = 112; PHQm = 80
    for j in range(8): a(f"v_cvt_pk_bf16_f32 v{KB+j}, v{AQ+2*j}, v{AQ+2*j+1}")
    mfma32(a, AK, PHIF, KB, None); mfma32(a, AK, PHIF+4, KB+4, AK)
    stamp(a, 'B')
    softmax(a, AK, E, T, PHQp, PHQm)
    stamp(a, 'B')
    a(f"v_and_b32 v{vT}, 15, v0\nv_lshlrev_b32 v{vT}, 2, v{vT}")
    lp = L("p1")
    a(f"{lp}:\nbuffer_load_dword v{vT2}, v{vT}, {srd(S_WS)}, s{sT3} offen sc1")
    a(f"s_sub_u32 s{sBUD}, s{sBUD}, 4\ns_cbranch_scc1 LEND")
    a(f"s_waitcnt vmcnt(0)\nv_cmp_ne_u32 vcc, v{vT2}, v{vNon}\ns_cbranch_vccnz {lp}")
    stamp(a, 'B')
    a(f"s_lshl_b32 s{sT2}, s{sH}, 16\ns_lshl_b32 s{sT0}, s{sWV}, 10\ns_add_u32 s{sT2}, s{sT2}, s{sT0}")
    for pp in range(8):
        for dt in range(2):
            r = X + 8*pp + 4*dt
            a(f"buffer_load_dwordx4 v[{r}:{r+3}], v{vPL}, {srd(S_WS)}, s{sT2} offen offset:{256*dt} sc1")
        if pp < 7: a(f"s_add_u32 s{sT2}, s{sT2}, 8192")
    a(f"s_lshl_b32 s{sT2}, s{sRB}, 2\ns_add_u32 s{sT2}, s{sT2}, s{sWV}\ns_lshl_b32 s{sT2}, s{sT2}, 4\ns_add_u32 s{sT2}, s{sT2}, s{sH}")
    a(f"s_lshl_b32 s{sT4}, s{sT2}, 2\ns_add_u32 s{sT4}, s{sT4}, {W_F2}\ns_lshl_b32 s{sT2}, s{sT2}, 11\ns_add_u32 s{sT2}, s{sT2}, {W_O}")
    for pp in range(8):
        for dt in range(2):
            a(f"s_waitcnt vmcnt({15-2*pp-dt})")
            mfma16(a, 16+4*dt, ASEL, X+8*pp+4*dt, 16+4*dt if pp else None)
    signal(a, C_FREE, vSM, vOne)
    a(f"v_cvt_pk_bf16_f32 v24, v16, v17\nv_cvt_pk_bf16_f32 v25, v18, v19\nv_cvt_pk_bf16_f32 v26, v20, v21\nv_cvt_pk_bf16_f32 v27, v22, v23")
    a(f"ds_write_b64 v{vKFW}, v[24:25]\nds_write_b64 v{vKFW}, v[26:27] offset:256")
    a("s_waitcnt lgkmcnt(0)"); signal(a, C_B2, vSM, vOne)
    lwait(a, C_B2, vSM, vT)
    stamp(a, 'B')
    for p in range(4): a(f"ds_read_b128 v[{48+4*p}:{51+4*p}], v{vKFR} offset:{1024*p}")
    N = 16
    for p in range(4):
        a(f"s_waitcnt lgkmcnt({3-p})")
        mfma32(a, N, 48+4*p, (PHQp if p < 2 else PHQm) + 4*(p & 1), N if p else None)
    a(f"v_mov_b32 v{vT}, 0")
    a(f"v_add_f32 v{T}, 0x358637bd, v{N+7}\nv_rcp_f32 v{T}, v{T}")
    for i in [0,1,2,3,4,5,6,8,9,10,11,12,13,14]: a(f"v_mul_f32 v{N+i}, v{N+i}, v{T}")
    for k in range(8):
        hi = f"v{N+2*k+1}" if (2*k+1) not in (7, 15) else "0"
        a(f"v_cvt_pk_bf16_f32 v{32+k}, v{N+2*k}, {hi}")
    a(f"buffer_store_dwordx4 v[32:35], v{vL16}, {srd(S_WS)}, s{sT2} offen sc1")
    a(f"buffer_store_dwordx4 v[36:39], v{vL16}, {srd(S_WS)}, s{sT2} offen offset:1024 sc1")
    a("s_waitcnt vmcnt(0)")
    a(f"s_mov_b64 exec, 1\nbuffer_store_dword v{vNon}, v{vT}, {srd(S_WS)}, s{sT4} offen sc1\ns_mov_b64 exec, -1")
    stamp(a, 'B')
    lwait(a, C_WO, vSM, vT)
    stamp(a, 'B')
    WOF = 128
    for h2 in range(16):
        if h2 == 9:
            for k in range(4): a(f"v_add_u32 v{WOR+k}, {9*7168}, v{WOR+k}")
        off = (h2 if h2 < 9 else h2-9)*7168
        for i in range(2):
            for sec in range(2):
                r = WOF + 8*h2 + 4*i + 2*sec
                a(f"ds_read_b64_tr_b16 v[{r}:{r+1}], v{WOR+2*i+sec} offset:{off}")
    sG = sT5
    a(f"s_lshl_b32 s{sG}, s{sXCD}, 3\ns_lshr_b32 s{sT0}, s{sI}, 2\ns_add_u32 s{sG}, s{sG}, s{sT0}")
    a(f"s_lshl_b32 s{sT3}, s{sG}, 2\ns_add_u32 s{sT3}, s{sT3}, s{sWV}\ns_lshl_b32 s{sT2}, s{sT3}, 13\ns_add_u32 s{sT2}, s{sT2}, {W_O}\ns_add_u32 s{sT4}, s{sT2}, 4096")
    a(f"s_lshl_b32 s{sT3}, s{sT3}, 4\ns_add_u32 s{sT3}, s{sT3}, {W_F2}")
    a(f"v_lshlrev_b32 v{vT}, 2, v{vCC}")
    a("s_waitcnt lgkmcnt(0)"); signal(a, C_WOR, vSM, vOne)
    stamp(a, 'B')
    lp = L("p2")
    a(f"{lp}:\nbuffer_load_dword v{vT2}, v{vT}, {srd(S_WS)}, s{sT3} offen sc1")
    a(f"s_sub_u32 s{sBUD}, s{sBUD}, 4\ns_cbranch_scc1 LEND")
    a(f"s_waitcnt vmcnt(0)\nv_cmp_ne_u32 vcc, v{vT2}, v{vNon}\ns_cbranch_vccnz {lp}")
    stamp(a, 'B')
    OL = 48
    for k in range(8):
        a(f"buffer_load_dwordx4 v[{OL+4*k}:{OL+4*k+3}], v{vL16}, {srd(S_WS)}, s{sT2 if k < 4 else sT4} offen offset:{1024*(k&3)} sc1")
    a(f"s_lshl_b32 s{sT1}, s{sWV}, 13\nv_add_u32 v{vT2}, s{sT1}, v{vL16}")
    vO = 88
    a(f"s_mul_i32 s{sT2}, s{sG}, {32*1792}\ns_and_b32 s{sT3}, s{sI}, 3\ns_lshl_b32 s{sT3}, s{sT3}, 2\ns_add_u32 s{sT3}, s{sT3}, s{sWV}\ns_lshl_b32 s{sT4}, s{sT3}, 6\ns_add_u32 s{sT2}, s{sT2}, s{sT4}\ns_add_u32 s{sT2}, s{sT2}, 896")
    a(f"v_mul_u32_u24 v{vO}, 1792, v{vR}\nv_lshl_add_u32 v{vO}, v{vHH}, 4, v{vO}")
    lwait(a, C_WOR, vSM, vT)
    for k in range(8):
        a(f"s_waitcnt vmcnt({7-k})\nds_write_b128 v{vT2}, v[{OL+4*k}:{OL+4*k+3}] offset:{OB+1024*k}")
    a("s_waitcnt lgkmcnt(0)"); signal(a, C_B3, vSM, vOne)
    a(f"s_cmp_ge_u32 s{sT3}, 14\ns_cbranch_scc1 LBX")
    lwait(a, C_B3, vSM, vT)
    stamp(a, 'B')
    OF = 48; NR = 8
    for n in range(NR): a(f"ds_read_b128 v[{OF+4*n}:{OF+4*n+3}], v{vL16} offset:{OB+1024*n}")
    for n in range(32):
        a(f"s_waitcnt lgkmcnt({min(NR-1, 31-n)})")
        mfma32(a, 16, WOF+4*n, OF+4*(n % NR), 16 if n else None)
        if n + NR < 32: a(f"ds_read_b128 v[{OF+4*(n%NR)}:{OF+4*(n%NR)+3}], v{vL16} offset:{OB+1024*(n+NR)}")
    for j in range(8): a(f"v_cvt_pk_bf16_f32 v{32+j}, v{16+2*j}, v{17+2*j}")
    a("v_permlane32_swap_b32 v32, v34\nv_permlane32_swap_b32 v33, v35\nv_permlane32_swap_b32 v36, v38\nv_permlane32_swap_b32 v37, v39")
    a(f"buffer_store_dwordx4 v[32:35], v{vO}, {srd(S_OUT)}, s{sT2} offen")
    a(f"buffer_store_dwordx4 v[36:39], v{vO}, {srd(S_OUT)}, s{sT2} offen offset:32")
    a("LBX:")
    stamp(a, 'B')
    stamps_out(a, 'B')

a = Asm()
prologue(a)
gen_A(a)
gen_B(a)
a("LEND:\ns_endpgm")
text = hz.fix(a.text())
tab, tn = tables()
text += "\n.p2align 8\nLTAB:\n" + tab + "\n"
src = make_file([(NAME+"_kernel", 256, 512, LDS_BYTES)], {NAME+"_kernel": (text, 256, 102, 256)}, single=True)
open(sys.argv[1], "w").write(src)
print("stamps B", nst['B'], "A", nst['A'], "table bytes", tn, "src bytes", len(src))
```

```python
import sys, math, struct
from asmlib import *
import hz

OPT = dict(stamps=0, mimic=1, hpx=4, rot=1, prio=2, clk=0, ahead=3, lst=0, seq=3, wolate=0)
for x in sys.argv[2:]:
    k, v = x.split('='); OPT[k] = int(v)

WKV = 0
WQ = 0
XR0 = 57344
SLOT = 16384
KVX = XR0
XP = 122880
STG = XP
UT = XP
SM = 155648
C_B1, C_B2, C_B3, C_WOR, C_WQ, C_WO, C_QG, C_U, C_G, C_A1E, C_P, NONCE, C_XP, C_A1D, C_O, C_Y, C_UA, C_UF = [4*i for i in range(18)]
YST = 32768
PHI = SM + 256
KVF = SM + 4096
OB = 0
def wobase(h): return 7168*h if h < 8 else (XR0 + 2*SLOT + 7168*(h-8) if h < 12 else XR0 + 7168*(h-12))
LDS_BYTES = 163840
W_KVP = 0x1000; W_O = 0x201000; W_U = 0x402000; W_FL = 0x180000
W_F1 = W_FL; W_F2 = W_FL + 0x1000; W_FU = W_FL + 0x2000
W_ST = 0x700000
W_WP = 0x700000
S_BX, S_W, S_AX, S_WO, S_WS, S_OUT, S_PHI, S_FR, S_FI, S_DBG = [32 + 4*i for i in range(10)]
sXCD, sI, sH, sRB, sWV, sROT, sBUD, sNON = 72, 73, 74, 75, 76, 77, 78, 79
sT0, sT1, sT2, sT3, sT4, sT5 = 80, 81, 82, 83, 84, 85
sL, sNL, sMASK, sLO = 86, 87, 88, 89
sTAB = 6
ST0 = 90
def srd(s): return f"s[{s}:{s+3}]"

class VM:
    def __init__(self, a): self.a = a; self.q = []
    def issue(self, tag, n=1): self.q += [tag]*n
    def wait(self, tag):
        if tag not in self.q: return
        idx = max(i for i, t in enumerate(self.q) if t == tag)
        n = len(self.q) - 1 - idx
        assert n <= 63
        self.a(f"s_waitcnt vmcnt({n})")
        self.q = self.q[idx+1:]
    def drain(self):
        self.a("s_waitcnt vmcnt(0)"); self.q = []

lab = [0]
def L(p):
    lab[0] += 1
    return f"L{p}_{lab[0]}"

nst = {'B': 0, 'A': 0}
names = {'B': ['start'], 'A': ['start']}
CLK = 's_memtime' if OPT['clk'] else 's_memrealtime'
STV = 15
NSTAMP = 24
def stamp(a, role, name=''):
    if not OPT['stamps']: return
    i = nst[role]; nst[role] += 1; names[role].append(name)
    assert i < NSTAMP
    a(f"{CLK} s[{ST0}:{ST0+1}]\ns_waitcnt lgkmcnt(0)\nv_writelane_b32 v{STV}, s{ST0}, {i}")
def stamps_out(a, role):
    if not OPT['stamps']: return
    lx = L("st")
    a(f"s_cmp_lg_u32 s{sWV}, 0\ns_cbranch_scc1 {lx}")
    a(f"v_mbcnt_lo_u32_b32 v1, -1, 0\nv_mbcnt_hi_u32_b32 v1, -1, v1\nv_lshlrev_b32 v1, 3, v1")
    a(f"s_mul_i32 s{sT0}, s2, {2*NSTAMP*8}\ns_add_u32 s{sT0}, s{sT0}, {W_ST + (NSTAMP*8 if role == 'A' else 0)}")
    a(f"v_mov_b32 v2, v{STV}\nv_mov_b32 v3, 0")
    a(f"s_mov_b64 exec, 0xffffff")
    a(f"buffer_store_dwordx2 v[2:3], v1, {srd(S_WS)}, s{sT0} offen")
    a(f"{lx}:")

def signal(a, cnt, vSM, vOne):
    a("s_mov_b64 exec, 1")
    a(f"ds_add_u32 v{vSM}, v{vOne} offset:{cnt}")
    a("s_mov_b64 exec, -1")
def lwait(a, cnt, vSM, vT, n=4):
    l = L("w")
    a(f"{l}:")
    a(f"ds_read_b32 v{vT}, v{vSM} offset:{cnt}")
    a(f"s_sub_u32 s{sBUD}, s{sBUD}, 1\ns_cbranch_scc1 LEND")
    a("s_waitcnt lgkmcnt(0)")
    a(f"v_readfirstlane_b32 s{sT0}, v{vT}")
    a(f"s_cmp_ge_u32 s{sT0}, {n}\ns_cbranch_scc0 {l}")
def gpoll(a, vDst, vAddr, sOff, vNon):
    lp = L("gp")
    a(f"{lp}:\nbuffer_load_dword v{vDst}, v{vAddr}, {srd(S_WS)}, s{sOff} offen sc1")
    a(f"s_sub_u32 s{sBUD}, s{sBUD}, 4\ns_cbranch_scc1 LEND")
    a(f"s_waitcnt vmcnt(0)\nv_cmp_ne_u32 vcc, v{vDst}, v{vNon}\ns_cbranch_vccnz {lp}")

def mfma32(a, d, A, B, c=None):
    cs = f"v[{c}:{c+15}]" if c is not None else "0"
    a(f"v_mfma_f32_32x32x16_bf16 v[{d}:{d+15}], v[{A}:{A+3}], v[{B}:{B+3}], {cs}")
def mfma16(a, d, A, B, c=None):
    cs = f"v[{c}:{c+3}]" if c is not None else "0"
    a(f"v_mfma_f32_16x16x32_bf16 v[{d}:{d+3}], v[{A}:{A+3}], v[{B}:{B+3}], {cs}")

def dmap(m):
    if m in (11, 15): return 28
    if m in (27, 31): return 29
    return m - (m > 11) - (m > 15) - (m > 27)

def bf16(x):
    u = struct.unpack('<I', struct.pack('<f', x))[0]
    return ((u + 0x7FFF + ((u >> 16) & 1)) >> 16) & 0xFFFF
def f32(x): return struct.unpack('<I', struct.pack('<f', x))[0]

T_M1 = 0; T_END = T_M1 + 2048
def tables():
    w = []
    for i in range(2):
        for l in range(64):
            j, hh = l & 31, l >> 5
            c, comp = j >> 1, j & 1
            vals = []
            for jj in range(8):
                s1 = 16*i + (jj & 3) + 8*(jj >> 2) + 4*hh
                if comp == 0: v = math.cos(2*math.pi*((c*s1) % 32)/32)
                elif c: v = -math.sin(2*math.pi*((c*s1) % 32)/32)
                else: v = math.cos(math.pi*s1)
                if abs(v) < 1e-9: v = 0.0
                vals.append(bf16(v))
            w += [vals[2*k] | (vals[2*k+1] << 16) for k in range(4)]
    out = []
    for i in range(0, len(w), 8):
        out.append(".long " + ",".join("0x%x" % x for x in w[i:i+8]))
    return "\n".join(out), 4*len(w)

def prologue(a):
    a("s_load_dwordx16 s[8:23], s[0:1], 0")
    a("s_load_dwordx8 s[24:31], s[0:1], 64")
    a("s_cmp_ge_u32 s2, 256\ns_cbranch_scc1 LEND")
    a(f"s_memrealtime s[{ST0}:{ST0+1}]")
    if OPT['stamps']:
        a(f"{CLK} s[{ST0+2}:{ST0+3}]")
    a("v_lshrrev_b32 v1, 6, v0\nv_and_b32 v0, 63, v0")
    a(f"v_mov_b32 v10, {SM}\nv_mov_b32 v11, 0\nv_lshl_add_u32 v2, v0, 2, v10\nds_write_b32 v2, v11\nv_mov_b32 v11, 1")
    a(f"s_and_b32 s{sXCD}, s2, 7\ns_lshr_b32 s{sI}, s2, 3")
    a(f"v_readfirstlane_b32 s{sWV}, v1")
    hpx = OPT['hpx']; lh = hpx.bit_length() - 1; lr_ = 5 - lh
    a(f"s_and_b32 s{sH}, s{sXCD}, {16//hpx - 1}\ns_lshl_b32 s{sH}, s{sH}, {lh}\ns_lshr_b32 s{sT0}, s{sI}, {lr_}\ns_add_u32 s{sH}, s{sH}, s{sT0}")
    a(f"s_lshr_b32 s{sRB}, s{sXCD}, {4-lh}\ns_lshl_b32 s{sRB}, s{sRB}, {lr_}\ns_and_b32 s{sT0}, s{sI}, {32//hpx - 1}\ns_add_u32 s{sRB}, s{sRB}, s{sT0}")
    a(f"s_lshl_b32 s{sROT}, s{sH}, 1\ns_add_u32 s{sROT}, s{sROT}, s{sRB}\ns_mul_i32 s{sT0}, s{sROT}, 37\ns_lshr_b32 s{sT0}, s{sT0}, 8\ns_mul_i32 s{sT0}, s{sT0}, 7\ns_sub_u32 s{sROT}, s{sROT}, s{sT0}")
    a(f"s_mov_b32 s{sBUD}, 0x200000")
    a(f"s_cmp_lt_u32 s{sWV}, 4\ns_cbranch_scc1 LB")
    a(f"s_sub_u32 s{sWV}, s{sWV}, 4")

def mk_srd(a, s, p, nbytes):
    a(f"s_mov_b32 s{s}, s{p}\ns_mov_b32 s{s+1}, s{p+1}\ns_mov_b32 s{s+2}, {nbytes}\ns_mov_b32 s{s+3}, 0x20000")

def table_base(a):
    a(f"s_getpc_b64 s[{sTAB}:{sTAB+1}]")
    l = L("pc")
    a(f"{l}:")
    a(f"s_add_u32 s{sTAB}, s{sTAB}, LTAB-{l}\ns_addc_u32 s{sTAB+1}, s{sTAB+1}, 0")

SEQS = {
 0: [[0, 1, 2, 3], [4, 5, 6]],
 1: [[0, 1], [2, 3], [4, 5, 6]],
 2: [[0, 1, 2], [3, 4, 5, 6]],
 3: [[0, 1, 2, 3, 4, 5, 6]],
}
SEQ = SEQS[OPT['seq']]

def gen_A(a):
    vm = VM(a)
    vW = [2, 3]; vX = [4, 5, 6, 7]; vXP = 8; vL16 = 9; vSM = 10; vOne = 11; vT = 12; vNon = 13; vT2 = 14; vZ = 29
    sXO, sWO_ = sT1, sT2
    sCW, sCX = 89, 62
    sWD, sXB = 86, 63
    sS2, sQ = 5, 3
    sMW, sMX = 88, 87
    if OPT.get('aprio', 1): a(f"s_setprio {OPT.get('aprio', 1)}")
    a(f"v_lshrrev_b32 v{vT}, 3, v0\nv_mul_u32_u24 v{vX[0]}, 896, v{vT}")
    a(f"v_and_b32 v{vT2}, 7, v0\nv_lshrrev_b32 v1, 4, v0\nv_xor_b32 v{vT2}, v{vT2}, v1\nv_lshlrev_b32 v{vT2}, 4, v{vT2}")
    a(f"v_lshl_add_u32 v{vXP}, v{vX[0]}, 6, v{vT2}\nv_add_u32 v{vX[0]}, v{vX[0]}, v{vT2}")
    a(f"v_xor_b32 v{vX[1]}, 64, v{vX[0]}\nv_add_u32 v{vX[2]}, {2*6144}, v{vX[0]}\nv_add_u32 v{vX[3]}, {3*6144}, v{vX[1]}\nv_add_u32 v{vX[1]}, 6144, v{vX[1]}")
    a(f"s_lshl_b32 s{sXB}, s{sRB}, 2\ns_add_u32 s{sXB}, s{sXB}, s{sWV}\ns_mul_i32 s{sXB}, s{sXB}, {32*896}")
    a(f"s_mov_b32 s{sCX}, s{sROT}\ns_lshl_b32 s{sMX}, s{sWV}, 12\ns_add_u32 s{sMX}, s{sMX}, {XR0}")
    a(f"v_lshrrev_b32 v{vT}, 2, v0\nv_mul_u32_u24 v{vW[0]}, 2688, v{vT}\nv_and_b32 v{vT}, 3, v0\nv_lshl_add_u32 v{vW[0]}, v{vT}, 4, v{vW[0]}")
    a(f"v_add_u32 v{vW[1]}, {16*2688-1024}, v{vW[0]}")
    a(f"s_and_b32 s{sT0}, s{sWV}, 1\ns_mul_i32 s{sWD}, s{sT0}, {32*2688}\ns_lshr_b32 s{sT0}, s{sWV}, 1\ns_add_u32 s{sT0}, s{sT0}, 1\ns_mul_i32 s{sT0}, s{sT0}, 896")
    a(f"s_add_u32 s{sWD}, s{sWD}, s{sT0}\ns_mul_i32 s{sT0}, s{sH}, 56\ns_add_u32 s{sWD}, s{sWD}, s{sT0}")
    a(f"s_lshl_b32 s{sMW}, s{sWV}, 11\ns_mov_b32 s{sCW}, s{sROT}")
    a("s_waitcnt lgkmcnt(0)")
    mk_srd(a, S_BX, 18, 2048*896); mk_srd(a, S_W, 20, 448*2688)
    def xchunk(i):
        a(f"s_lshl_b32 s{sXO}, s{sCX}, 7\ns_add_u32 s{sXO}, s{sXO}, s{sXB}")
        a(f"s_add_u32 m0, s{sMX}, {(i % 4)*SLOT}")
        a(f"s_add_u32 s{sCX}, s{sCX}, 1")
        for k in range(4):
            a(f"buffer_load_dwordx4 v{vX[k]}, {srd(S_BX)}, s{sXO} offen offset:{1024*k} lds")
        a(f"s_cmp_eq_u32 s{sCX}, 7\ns_cselect_b32 s{sCX}, 0, s{sCX}")
        vm.issue(f"c{i}", 4)
    def wchunk(j):
        a(f"s_mul_i32 s{sWO_}, s{sCW}, {64*2688}\ns_add_u32 m0, s{sMW}, {WKV + j*8192}\ns_add_u32 s{sWO_}, s{sWO_}, s{sWD}")
        a(f"s_add_u32 s{sCW}, s{sCW}, 1")
        for k in range(2):
            a(f"buffer_load_dwordx4 v{vW[k]}, {srd(S_W)}, s{sWO_} offen offset:{1024*k} lds")
        a(f"s_cmp_eq_u32 s{sCW}, 7\ns_cselect_b32 s{sCW}, 0, s{sCW}")
        vm.issue(f"c{j}", 2)
    xchunk(0); wchunk(0)
    a(f"s_lshr_b32 s{sT0}, s{sI}, 2\ns_lshl_b32 s{sS2}, s{sXCD}, 3\ns_add_u32 s{sS2}, s{sS2}, s{sT0}\ns_and_b32 s{sQ}, s{sI}, 3")
    mk_srd(a, S_AX, 8, 2048*896)
    def load_m1(tag):
        a(f"global_load_dwordx4 v[20:23], v{vL16}, s[{sTAB}:{sTAB+1}] offset:{T_M1}")
        a(f"global_load_dwordx4 v[24:27], v{vL16}, s[{sTAB}:{sTAB+1}] offset:{T_M1+1024}")
        vm.issue(tag, 2)
    def load_xp():
        a(f"s_and_b32 s{sT0}, s{sWV}, 1\ns_lshl_b32 s{sT0}, s{sT0}, 6\nv_xor_b32 v{vXP}, s{sT0}, v{vXP}")
        a(f"s_lshl_b32 s{sXO}, s{sWV}, 9\ns_add_u32 s{sXO}, s{sXO}, s{sS2}\ns_mul_i32 s{sXO}, s{sXO}, 896")
        a(f"s_lshl_b32 s{sT0}, s{sWV}, 10\ns_add_u32 m0, s{sT0}, {XP}")
        for lc in range(7):
            a(f"buffer_load_dwordx4 v{vXP}, {srd(S_AX)}, s{sXO} offen lds")
            if lc < 6: a(f"s_add_u32 m0, m0, 4096\ns_add_u32 s{sXO}, s{sXO}, 128")
        vm.issue("xp", 7)
        if not OPT.get('a1late', 1): load_m1("xp")
    a(f"v_lshlrev_b32 v{vL16}, 4, v0")
    table_base(a)
    XPOS = OPT.get('xpos', 8)
    if OPT['stamps']:
        a(f"v_mov_b32 v{STV}, 0\nv_writelane_b32 v{STV}, s{ST0+2}, 0"); nst['A'] = 1
    a(f"v_mov_b32 v{vZ}, 0")
    ln = L("non")
    a(f"s_or_b32 s{sT0}, s2, s{sWV}\ns_cmp_lg_u32 s{sT0}, 0\ns_cbranch_scc1 {ln}")
    a(f"s_or_b32 s{sT0}, s{ST0}, 1\nv_mov_b32 v{vT}, s{sT0}")
    a(f"s_mov_b64 exec, 1\nglobal_store_dword v{vZ}, v{vT}, s[28:29] sc1\ns_mov_b64 exec, -1")
    a(f"{ln}:")
    if OPT['lst']: stamp(a, 'A', 'first issued')
    def load_wq():
        a(f"s_mul_i32 s{sT5}, s{sWV}, {16*2688}\ns_mul_i32 s{sT0}, s{sH}, 56\ns_add_u32 s{sT5}, s{sT5}, s{sT0}\ns_lshl_b32 s{sT0}, s{sWV}, 10")
        a(f"s_add_u32 m0, s{sT0}, {WQ}\ns_mov_b32 s{sT4}, s{sROT}")
        for i in range(7):
            a(f"s_mul_i32 s{sWO_}, s{sT4}, {64*2688}\ns_add_u32 s{sWO_}, s{sWO_}, s{sT5}")
            a(f"buffer_load_dwordx4 v{vW[0]}, {srd(S_W)}, s{sWO_} offen lds")
            if i < 6:
                a(f"s_add_u32 m0, m0, 4096")
                a(f"s_add_u32 s{sT4}, s{sT4}, 1\ns_cmp_eq_u32 s{sT4}, 7\ns_cselect_b32 s{sT4}, 0, s{sT4}")
        vm.issue("wq", 7)
    FG = 128; GEN = 80; K2 = 96; vE = 98
    a(f"s_lshl_b32 s{sT0}, s{sQ}, 6\ns_and_b32 s{sT4}, s{sWV}, 1\ns_lshl_b32 s{sT4}, s{sT4}, 5\ns_add_u32 s{sT0}, s{sT0}, s{sT4}")
    a(f"v_and_b32 v{vE}, 31, v0\nv_add_u32 v{vE}, s{sT0}, v{vE}")
    a(f"s_cmp_lt_u32 s{sWV}, 2\ns_cselect_b32 s{sT4}, 0, 0x3e800000")
    a(f"s_mov_b32 s{sT5}, {hex(f32(1/448))}")
    a(f"v_cvt_f32_u32 v1, v{vE}\nv_mul_f32 v1, s{sT5}, v1\nv_sin_f32 v{vT}, v1\nv_cos_f32 v{vT2}, v1")
    a(f"v_lshrrev_b32 v99, 5, v0\nv_mul_u32_u24 v99, 224, v99\nv_add_u32 v99, 444, v99\nv_mul_u32_u24 v99, v99, v{vE}")
    a(f"v_mul_f32 v{vT}, v{vT}, v{vT}\nv_mul_f32 v{vT2}, v{vT2}, v{vT2}")
    a(f"v_cmp_lt_f32 vcc, v{vT}, v{vT2}\nv_fma_f32 v{vT}, v{vT}, -4.0, 2.0\nv_fma_f32 v{vT2}, v{vT2}, 4.0, -2.0\nv_cndmask_b32 v{K2}, v{vT2}, v{vT}, vcc")
    a(f"v_mov_b32 v100, s{sT4}")
    for k in range(4):
        r = GEN + 12 + k
        a(f"v_lshrrev_b32 v1, 6, v99\nv_mul_u32_u24 v1, 9363, v1\nv_lshrrev_b32 v1, 16, v1\nv_mul_u32_u24 v1, 448, v1\nv_sub_u32 v1, v99, v1")
        a(f"v_cvt_f32_u32 v1, v1\nv_fma_f32 v1, v1, s{sT5}, v100\nv_cos_f32 v{r}, v1")
        if k < 3: a(f"v_add_u32 v99, v99, v{vE}")
    lg_ = L("gen")
    a(f"s_mov_b32 s{sT0}, 0\n{lg_}:")
    p2, p1 = GEN+12, GEN+14
    for i in range(2):
        g = GEN + 8*i
        for j in range(4):
            d = g + 2*j
            a(f"v_pk_fma_f32 v[{d}:{d+1}], v[{K2}:{K2+1}], v[{p1}:{p1+1}], v[{p2}:{p2+1}] op_sel_hi:[0,1,1] neg_lo:[0,0,1] neg_hi:[0,0,1]")
            p2, p1 = p1, d
    a(f"s_set_gpr_idx_on s{sT0}, gpr_idx(DST)")
    for j in range(8): a(f"v_cvt_pk_bf16_f32 v{FG+j}, v{GEN+2*j}, v{GEN+2*j+1}")
    a(f"s_set_gpr_idx_off\ns_add_u32 s{sT0}, s{sT0}, 8\ns_cmp_lt_u32 s{sT0}, {OPT.get('genn', 112)}\ns_cbranch_scc1 {lg_}")
    if OPT['lst']: stamp(a, 'A', 'gen')
    mk_srd(a, S_WO, 24, 448*896); mk_srd(a, S_WS, 30, 0x10000000); mk_srd(a, S_OUT, 26, 2048*1792)
    aXP = 48
    a(f"v_and_b32 v1, 31, v0\nv_lshrrev_b32 v{vT2}, 5, v0\nv_bfe_u32 v{vT}, v0, 1, 3\nv_lshlrev_b32 v{vT2}, 2, v{vT2}\nv_xor_b32 v{vT}, v{vT}, v{vT2}")
    a(f"v_lshlrev_b32 v1, 7, v1\nv_lshl_add_u32 v1, v{vT}, 4, v1\nv_add_u32 v1, {XP}, v1")
    a(f"v_mul_u32_u24 v{vT2}, {3*1024}, v{vT2}\nv_add_u32 v1, v1, v{vT2}")
    a(f"v_lshrrev_b32 v{vT2}, 5, v0\nv_lshlrev_b32 v{vT2}, 12, v{vT2}")
    for k in range(8):
        a(f"v_xor_b32 v{aXP+k}, {16*k}, v1")
        if k >= 4: a(f"v_add_u32 v{aXP+k}, v{aXP+k}, v{vT2}")
    sCL, sQ2, sTQ, sUA, sUB, sUF = 64, 4, 65, 66, 67, 68
    vTT = 28; FR, FI, NFI = 32, 40, 240
    def fs_gen():
        a(f"s_lshr_b32 s{sCL}, s{sI}, 4\ns_lshl_b32 s{sT0}, s{sXCD}, 1\ns_add_u32 s{sCL}, s{sCL}, s{sT0}\ns_lshr_b32 s{sQ2}, s{sI}, 2\ns_and_b32 s{sQ2}, s{sQ2}, 3\ns_and_b32 s{sTQ}, s{sI}, 3")
        a(f"s_cmp_lt_u32 s{sTQ}, 2\ns_cselect_b32 s{sT4}, 16, -992\ns_cmp_eq_u32 s{sCL}, 0\ns_cselect_b32 s{sT4}, s{sT4}, s{sCL}")
        a(f"s_lshl_b32 s{sT0}, s{sTQ}, 9\ns_add_u32 s{sT0}, s{sT0}, s{sT4}")
        a(f"v_and_b32 v1, 15, v0\nv_lshlrev_b32 v1, 5, v1\nv_add_u32 v{vTT}, s{sT0}, v1")
        a(f"v_cvt_f32_u32 v30, v{vTT}\nv_mul_f32 v30, {hex(f32(1/2048))}, v30\nv_lshrrev_b32 v1, 4, v0\nv_lshlrev_b32 v1, 3, v1\nv_cvt_f32_u32 v1, v1\nv_mul_f32 v31, v30, v1")
        a(f"s_mov_b32 s{sT4}, 0x80008000\ns_mov_b32 s{sT0}, {hex(f32(24.0))}")
        for ks in range(2):
            if ks: a(f"v_fma_f32 v31, v30, s{sT0}, v31")
            for jp in range(4):
                a(f"v_cos_f32 v248, v31\nv_sin_f32 v250, -v31\nv_add_f32 v31, v31, v30\nv_cos_f32 v249, v31\nv_sin_f32 v251, -v31\nv_add_f32 v31, v31, v30")
                a(f"v_cvt_pk_bf16_f32 v{FR+4*ks+jp}, v248, v249\nv_cvt_pk_bf16_f32 v{FI+4*ks+jp}, v250, v251\nv_xor_b32 v{NFI+4*ks+jp}, s{sT4}, v{FI+4*ks+jp}")
    ACC, XR = 64, 96
    def a1_slice(i0_, i1_):
        n = i1_ - i0_
        for i in range(i0_, i1_):
            a(f"ds_read_b128 v[{XR+4*(i-i0_)}:{XR+4*(i-i0_)+3}], v{aXP+(i&7)} offset:{(i>>3)*4096}")
        for i in range(i0_, i1_):
            a(f"s_waitcnt lgkmcnt({i1_-1-i})")
            mfma32(a, ACC, XR+4*(i-i0_), FG+4*i, ACC if i else None)
    aSW, aSR, vUO = 56, 60, 61
    vWO = [16, 17, 18, 19]
    def u_addr():
        a(f"s_lshl_b32 s{sT0}, s{sWV}, 11\ns_add_u32 s{sT0}, s{sT0}, {STG}")
        a(f"v_and_b32 v1, 31, v0\nv_lshlrev_b32 v1, 6, v1\nv_bfe_u32 v{vT}, v0, 1, 2\nv_lshl_add_u32 v1, v{vT}, 4, v1\nv_lshrrev_b32 v{vT}, 5, v0\nv_lshl_add_u32 v1, v{vT}, 3, v1\nv_add_u32 v1, s{sT0}, v1")
        for k in range(4): a(f"v_xor_b32 v{aSW+k}, {16*k}, v1")
        a(f"v_bfe_u32 v{vT}, v0, 3, 2\nv_and_b32 v1, 3, v0\nv_xor_b32 v{vT}, v{vT}, v1\nv_lshrrev_b32 v{aSR}, 2, v0\nv_lshlrev_b32 v{aSR}, 6, v{aSR}\nv_lshl_add_u32 v{aSR}, v{vT}, 4, v{aSR}\nv_add_u32 v{aSR}, s{sT0}, v{aSR}")
        a(f"s_bfe_u32 s{sT0}, s{sS2}, 0x10001\ns_bfe_u32 s{sT4}, s{sS2}, 0x10003\ns_lshl_b32 s{sT4}, s{sT4}, 1\ns_or_b32 s{sT0}, s{sT0}, s{sT4}\ns_lshl_b32 s{sT0}, s{sT0}, 5")
        a(f"s_and_b32 s{sT4}, s{sWV}, 1\ns_lshl_b32 s{sT4}, s{sT4}, 6\ns_xor_b32 s{sT0}, s{sT0}, s{sT4}")
        a(f"v_lshlrev_b32 v1, 4, v1\nv_xor_b32 v1, s{sT0}, v1\nv_lshrrev_b32 v{vT}, 3, v0\nv_lshl_add_u32 v1, v{vT}, 17, v1\nv_bfe_u32 v{vT}, v0, 2, 1\nv_lshl_add_u32 v{vUO}, v{vT}, 13, v1")
        a(f"s_lshl_b32 s{sT0}, s{sQ}, 1\ns_lshr_b32 s{sT4}, s{sWV}, 1\ns_add_u32 s{sT0}, s{sT0}, s{sT4}")
        a(f"s_lshl_b32 s{sUA}, s{sT0}, 14\ns_lshl_b32 s{sT4}, s{sS2}, 7\ns_add_u32 s{sUA}, s{sUA}, s{sT4}\ns_add_u32 s{sUA}, s{sUA}, {W_U}\ns_add_u32 s{sUB}, s{sUA}, 0x100000")
        a(f"s_lshl_b32 s{sUF}, s{sQ}, 6\ns_add_u32 s{sUF}, s{sUF}, s{sS2}\ns_lshl_b32 s{sUF}, s{sUF}, 7\ns_add_u32 s{sUF}, s{sUF}, {W_FU}")
        a(f"v_lshrrev_b32 v1, 4, v0\nv_lshlrev_b32 v{vT}, 2, v1\nv_and_b32 v{vT2}, 15, v0\nv_xor_b32 v{vT}, v{vT}, v{vT2}\nv_mul_u32_u24 v1, 896, v1\nv_lshl_add_u32 v{vWO[0]}, v{vT}, 4, v1")
        for j in range(1, 4): a(f"v_add_u32 v{vWO[j]}, {j*(4*896-1024)}, v{vWO[0]}")
    def stage1():
        for j in range(8): a(f"v_cvt_pk_bf16_f32 v{GEN+j}, v{ACC+2*j}, v{ACC+2*j+1}")
        mfma32(a, ACC, GEN, 20, None)
        mfma32(a, ACC, GEN+4, 24, ACC)
        lwait(a, C_A1D, vSM, vT)
        a("s_nop 7")
        for j in range(8): a(f"v_cvt_pk_bf16_f32 v{GEN+j}, v{ACC+2*j}, v{ACC+2*j+1}")
        for k in range(4): a(f"ds_write_b64 v{aSW+k}, v[{GEN+2*k}:{GEN+2*k+1}]")
        a("s_waitcnt lgkmcnt(0)")
        a(f"ds_read_b128 v[{XR}:{XR+3}], v{aSR}\nds_read_b128 v[{XR+4}:{XR+7}], v{aSR} offset:1024")
        a("s_waitcnt lgkmcnt(1)")
        a(f"buffer_store_dwordx4 v[{XR}:{XR+3}], v{vUO}, {srd(S_WS)}, s{sUA} offen sc1")
        a("s_waitcnt lgkmcnt(0)")
        a(f"buffer_store_dwordx4 v[{XR+4}:{XR+7}], v{vUO}, {srd(S_WS)}, s{sUB} offen sc1")
        vm.issue("u", 2)
        signal(a, C_A1E, vSM, vOne)
    def warm():
        lw = L("wm")
        a(f"s_cmp_lt_u32 s{sWV}, 2\ns_cbranch_scc1 {lw}a\ns_cmp_eq_u32 s{sWV}, 2\ns_cbranch_scc1 {lw}b")
        a(f"s_and_b32 s{sT0}, s{sRB}, 7\ns_mul_i32 s{sT0}, s{sT0}, {56*2688}\ns_mul_i32 s{sT4}, s{sH}, 56\ns_add_u32 s{sT0}, s{sT0}, s{sT4}")
        a(f"v_mul_u32_u24 v1, 2688, v0\nbuffer_load_dword v30, v1, {srd(S_W)}, s{sT0} offen\nbuffer_load_dword v31, v1, {srd(S_W)}, s{sT0} offen offset:52\ns_branch {lw}x")
        a(f"{lw}b:")
        a(f"v_lshrrev_b32 v1, 3, v0\nv_mul_u32_u24 v1, 896, v1\nv_lshlrev_b32 v1, 6, v1\nv_and_b32 v30, 7, v0\nv_min_u32 v30, 6, v30\nv_lshl_add_u32 v1, v30, 7, v1")
        a(f"s_lshl_b32 s{sT0}, s{sQ}, 9\ns_add_u32 s{sT0}, s{sT0}, s{sS2}\ns_mul_i32 s{sT0}, s{sT0}, 896")
        a(f"buffer_load_dword v30, v1, {srd(S_AX)}, s{sT0} offen\nbuffer_load_dword v31, v1, {srd(S_AX)}, s{sT0} offen\ns_branch {lw}x")
        a(f"{lw}a:")
        a(f"s_lshl_b32 s{sT0}, s{sI}, 1\ns_add_u32 s{sT0}, s{sT0}, s{sWV}\ns_mul_i32 s{sT0}, s{sT0}, {49*128}\nv_min_u32 v1, 48, v0\nv_lshlrev_b32 v1, 7, v1")
        a(f"buffer_load_dword v30, v1, {srd(S_WO)}, s{sT0} offen\nbuffer_load_dword v31, v1, {srd(S_WO)}, s{sT0} offen")
        a(f"{lw}x:")
        vm.issue("pf", 2)
    spf = []
    if OPT.get('spf', 0):
        sPA, sPB = 94, 96
        a(f"s_mul_i32 s{sT0}, s{sI}, 98\ns_mul_i32 s{sT4}, s{sWV}, 49\ns_lshr_b32 s{sT4}, s{sT4}, 1\ns_add_u32 s{sT0}, s{sT0}, s{sT4}\ns_lshl_b32 s{sT0}, s{sT0}, 7\ns_add_u32 s{sPA}, s24, s{sT0}\ns_addc_u32 s{sPA+1}, s25, 0")
        a(f"s_lshl_b32 s{sT0}, s{sQ}, 2\ns_add_u32 s{sT0}, s{sT0}, s{sWV}\ns_lshl_b32 s{sT0}, s{sT0}, 7\ns_add_u32 s{sT0}, s{sT0}, s{sS2}\ns_mul_i32 s{sT0}, s{sT0}, 896\ns_add_u32 s{sPB}, s8, s{sT0}\ns_addc_u32 s{sPB+1}, s9, 0")
        halves = (0, 64) if OPT.get('spf', 0) == 2 else (0,)
        spf += [f"s_load_dword s98, s[{sPB}:{sPB+1}], {r*57344 + k*128 + hf}" for r in range(2) for k in range(7) for hf in halves]
        spf += [f"s_load_dword s98, s[{sPA}:{sPA+1}], {k*128 + hf}" for k in range(25) for hf in halves]
    u_addr()
    if OPT['lst']: stamp(a, 'A', 'addr')
    xchunk(1); wchunk(1); xchunk(2); wchunk(2)
    for c in range(7):
        vm.wait(f"c{c}"); a("s_barrier")
        if OPT['lst'] and c in (0, 3, 6): stamp(a, 'A', f'bar{c}')
        if c + 3 < 7: xchunk(c+3); wchunk(c+3)
        if c + 3 == XPOS and XPOS <= 6: load_xp()
        if OPT.get('sp0', 1) <= c:
            per = -(-len(spf) // max(1, OPT.get('sp1', 5) - c + 1)) if c <= OPT.get('sp1', 5) else 0
            for _ in range(per): a(spf.pop(0))
        if c == 1: a(f"global_load_dword v{vNon}, v{vZ}, s[28:29] sc1"); vm.issue("non")
        if c == 5:
            assert "non" not in vm.q
            lr = L("nr")
            a(f"{lr}:\nv_readfirstlane_b32 s{sNON}, v{vNon}\ns_cmp_lg_u32 s{sNON}, 0\ns_cbranch_scc1 {lr}x")
            a(f"s_sub_u32 s{sBUD}, s{sBUD}, 64\ns_cbranch_scc1 {lr}x")
            a(f"global_load_dword v{vNon}, v{vZ}, s[28:29] sc1\ns_waitcnt vmcnt(0)\ns_branch {lr}")
            a(f"{lr}x:")
            a(f"ds_write_b32 v{vSM}, v{vNon} offset:{NONCE}")
        if c == OPT.get('xw', 6): load_wq()
        if XPOS > 6 and c == XPOS - 3: load_xp()
    sWS, sWM = 60, 61
    def wo_steps(slot0):
        def step(n):
            def f():
                if n == 0:
                    a(f"s_lshl_b32 s{sWS}, s{sI}, 1\ns_and_b32 s{sWS}, s{sWS}, 8\ns_add_u32 s{sWS}, s{sWS}, s{sWV}\ns_add_u32 s{sWS}, s{sWS}, {slot0}\ns_and_b32 s{sWS}, s{sWS}, 15")
                    a(f"s_mul_i32 s{sWS}, s{sWS}, {28*896}\ns_and_b32 s{sWM}, s{sI}, 3\ns_lshl_b32 s{sWM}, s{sWM}, 8\ns_add_u32 s{sWS}, s{sWS}, s{sWM}")
                    a(f"s_mul_i32 s{sWM}, s{sWV}, 7168\ns_add_u32 m0, s{sWM}, {wobase(slot0)}")
                if n == 4: a(f"s_add_u32 m0, m0, 4096\ns_add_u32 s{sWS}, s{sWS}, {16*896}")
                a(f"buffer_load_dwordx4 v{vWO[n & 3]}, {srd(S_WO)}, s{sWS} offen offset:{1024*(n & 3)} lds")
                vm.issue("wo")
            return f
        return [step(n) for n in range(7)]
    def load_wo(slot0):
        for f in wo_steps(slot0): f()
    LATE = OPT.get('a1late', 1)
    wsteps = wo_steps(4) + wo_steps(8)
    def a1_all(NR, win):
        if XPOS >= 6: lwait(a, C_XP, vSM, vT)
        stamp(a, 'A', 'A1 start')
        a(f"s_setprio {OPT.get('a1prio', 1)}")
        for i in range(NR):
            a(f"ds_read_b128 v[{XR+4*i}:{XR+4*i+3}], v{aXP+(i&7)} offset:{(i>>3)*4096}")
        for i in range(28):
            a(f"s_waitcnt lgkmcnt({min(NR-1, 27-i)})")
            mfma32(a, ACC, XR+4*(i % NR), FG+4*i, ACC if i else None)
            if i + NR < 28:
                n = i + NR
                a(f"ds_read_b128 v[{XR+4*(n%NR)}:{XR+4*(n%NR)+3}], v{aXP+(n&7)} offset:{(n>>3)*4096}")
            if i >= 28 - 2*win and i % 2 == 1: wsteps.pop(0)()
        signal(a, C_A1D, vSM, vOne)
    if not LATE:
        if XPOS >= 6:
            vm.wait("xp"); signal(a, C_XP, vSM, vOne)
        lwait(a, C_G, vSM, vT)
        a1_all(8, OPT.get('win', 7))
        vm.wait("wq"); signal(a, C_WQ, vSM, vOne)
        stamp(a, 'A', 'A1 gemm')
        stage1()
        stamp(a, 'A', 'U stored')
    a("s_setprio 0")
    vTag, vPL, vKFW, ASEL, vOW, vCK = 2, 3, 4, 124, 5, 6
    sLO_, sPL, sOL, sOL2, sMS = 69, 70, 71, 86, 87
    a(f"s_mul_i32 s{sT0}, s{sNON}, 0x9e3779b1\nv_and_b32 v1, 3, v0\nv_cmp_lt_u32 vcc, 1, v1\nv_mov_b32 v{vT}, s{sT0}\nv_and_b32 v{vT2}, 1, v0\nv_cndmask_b32 v{vT}, v{vNon}, v{vT}, vcc")
    a(f"v_lshlrev_b32 v{vT2}, 4, v{vT2}\nv_xor_b32 v{vT2}, 16, v{vT2}\nv_lshlrev_b32 v{vT}, v{vT2}, v{vT}\nv_and_b32 v{vTag}, 0xbfff0000, v{vT}\ns_mov_b32 s{sLO_}, 0xffff")
    a(f"v_and_b32 v{vT}, 15, v0\nv_bfe_u32 v{vT2}, v0, 4, 1\nv_lshlrev_b32 v1, 4, v{vT}\nv_lshl_add_u32 v1, v{vT2}, 9, v1\nv_lshrrev_b32 v{vOW}, 5, v0")
    a(f"v_lshl_add_u32 v{vPL}, v{vOW}, 12, v1\nv_lshl_add_u32 v{vKFW}, v{vOW}, 3, v1\ns_lshl_b32 s{sT0}, s{sWV}, 10\ns_add_u32 s{sT4}, s{sT0}, {KVF}\nv_add_u32 v{vKFW}, s{sT4}, v{vKFW}")
    a(f"s_lshl_b32 s{sPL}, s{sH}, 16\ns_add_u32 s{sPL}, s{sPL}, s{sT0}\ns_add_u32 s{sPL}, s{sPL}, {W_KVP}")
    a(f"v_lshlrev_b32 v{vT2}, 2, v{vT2}\nv_sub_u32 v{vT}, v{vT}, v{vT2}")
    a(f"v_bfe_u32 v{vT2}, v{vT}, 1, 1\nv_bfe_u32 v1, v{vT}, 3, 1\nv_lshl_or_b32 v{vT2}, v1, 1, v{vT2}\nv_and_or_b32 v{vT2}, v{vT}, 4, v{vT2}")
    a(f"v_and_b32 v{vT}, 1, v{vT}\nv_lshlrev_b32 v{vT}, 4, v{vT}\nv_mov_b32 v1, 0x3f80\nv_lshlrev_b32 v{vT}, v{vT}, v1")
    for k in range(4): a(f"v_cmp_eq_u32 vcc, {k}, v{vT2}\nv_cndmask_b32 v{ASEL+k}, 0, v{vT}, vcc")
    a(f"s_lshl_b32 s{sOL}, s{sXCD}, 3\ns_lshr_b32 s{sT0}, s{sI}, 2\ns_add_u32 s{sOL}, s{sOL}, s{sT0}\ns_lshl_b32 s{sOL}, s{sOL}, 2")
    a(f"s_lshr_b32 s{sT0}, s{sI}, 1\ns_and_b32 s{sT0}, s{sT0}, 2\ns_add_u32 s{sT0}, s{sT0}, s{sWV}\ns_and_b32 s{sT0}, s{sT0}, 3\ns_add_u32 s{sOL}, s{sOL}, s{sT0}")
    a(f"s_lshl_b32 s{sOL}, s{sOL}, 13\ns_add_u32 s{sOL}, s{sOL}, {W_O}\ns_add_u32 s{sOL2}, s{sOL}, 4096")
    a(f"s_lshl_b32 s{sT0}, s{sWV}, 13\ns_add_u32 s{sT0}, s{sT0}, {OB}\nv_add_u32 v{vOW}, s{sT0}, v{vL16}")
    KAS = [120, 108]
    for k in range(8): a(f"v_mov_b32 v{KAS[k>>2]+(k&3)}, 0")
    if LATE:
        lwait(a, C_G, vSM, vT)
        if OPT.get('wo4', 1):
            for _ in range(7): wsteps.pop(0)()
        vm.wait("wq"); signal(a, C_WQ, vSM, vOne)
        stamp(a, 'A', 'wq landed')
        vm.wait("xp"); signal(a, C_XP, vSM, vOne)
    def gather(n, R, issue, consume, between, mark):
        for p in range(n): issue(p)
        extra = between() or 0
        a(f"s_mov_b32 s{sMS}, 0")
        def check(p, setbit):
            l = L("ck")
            r = R(p)
            a(f"v_bitop3_b32 v{vCK}, v{r+3}, v{r+7}, v{vTag} bitop3:0x7e\nv_cmp_lt_u32 vcc, s{sLO_}, v{vCK}\ns_cbranch_vccnz {l}m")
            consume(p)
            if setbit: a(f"s_branch {l}x\n{l}m:\ns_bitset1_b32 s{sMS}, {p}\n{l}x:")
            else: a(f"s_bitset0_b32 s{sMS}, {p}\n{l}m:")
        for p in range(n):
            a(f"s_waitcnt vmcnt({2*(n-1-p) + extra})")
            check(p, True)
        lr_ = L("rt")
        a(f"{lr_}:\ns_cmp_eq_u32 s{sMS}, 0\ns_cbranch_scc1 {lr_}x")
        if OPT['stamps']: a(f"v_writelane_b32 v{STV}, s{sBUD}, {mark}")
        a(f"s_sub_u32 s{sBUD}, s{sBUD}, 8\ns_cbranch_scc1 LEND\ns_waitcnt lgkmcnt(0)")
        for p in range(n):
            a(f"s_bitcmp1_b32 s{sMS}, {p}\ns_cbranch_scc0 {lr_}i{p}")
            issue(p)
            a(f"{lr_}i{p}:")
        a("s_waitcnt vmcnt(0)")
        for p in range(n):
            a(f"s_bitcmp1_b32 s{sMS}, {p}\ns_cbranch_scc0 {lr_}c{p}")
            check(p, False)
            a(f"{lr_}c{p}:")
        a(f"s_branch {lr_}\n{lr_}x:")
    PRL = [20, 32, 40, 240, 248, 80, 88, 112] if LATE else [128 + 8*p for p in range(8)]
    PR = lambda p: PRL[p]
    lwait(a, C_P, vSM, vT)
    stamp(a, 'A', 'C_P seen')
    if OPT.get('wo8', 1):
        while wsteps: wsteps.pop(0)()
        stamp(a, 'A', 'wo8 issued')
    def p_issue(p):
        a(f"s_add_u32 s{sT4}, s{sPL}, {8192*p}")
        for dt in range(2):
            r = PR(p) + 4*dt
            a(f"buffer_load_dwordx4 v[{r}:{r+3}], v{vPL}, {srd(S_WS)}, s{sT4} offen offset:{256*dt} sc1")
    def p_consume(p):
        for dt in range(2): mfma16(a, KAS[dt], ASEL, PR(p)+4*dt, KAS[dt])
    def p_between():
        stamp(a, 'A', 'partials asked')
        if OPT.get('pw'):
            a("s_waitcnt vmcnt(15)"); stamp(a, 'A', 'first partial'); a("s_waitcnt vmcnt(0)"); stamp(a, 'A', 'last partial')
        if LATE: a1_all(3, 0); a("s_setprio 0"); stamp(a, 'A', 'A1 gemm')
        else: fs_gen()
    gather(8, PR, p_issue, p_consume, p_between, 23)
    vm.q = []
    a("s_nop 7")
    a(f"v_cvt_pk_bf16_f32 v80, v{KAS[0]}, v{KAS[0]+1}\nv_cvt_pk_bf16_f32 v81, v{KAS[0]+2}, v{KAS[0]+3}\nv_cvt_pk_bf16_f32 v82, v{KAS[1]}, v{KAS[1]+1}\nv_cvt_pk_bf16_f32 v83, v{KAS[1]+2}, v{KAS[1]+3}")
    a(f"ds_write_b64 v{vKFW}, v[80:81]\nds_write_b64 v{vKFW}, v[82:83] offset:256")
    a("s_waitcnt lgkmcnt(0)"); signal(a, C_B2, vSM, vOne)
    stamp(a, 'A', 'kv ready')
    def u_flag():
        lf = L("uf")
        a(f"s_mov_b64 exec, 1\nds_add_rtn_u32 v{vT}, v{vSM}, v{vOne} offset:{C_UA}\ns_waitcnt lgkmcnt(0)\nv_readfirstlane_b32 s{sT0}, v{vT}\ns_cmp_lg_u32 s{sT0}, 3\ns_cbranch_scc1 {lf}")
        a(f"buffer_store_dword v{vNon}, v{vZ}, {srd(S_WS)}, s{sUF} offen sc1\n{lf}:\ns_mov_b64 exec, -1")
    if not LATE: u_flag()
    else: load_m1("m1")
    lwait(a, C_QG, vSM, vT)
    while wsteps: wsteps.pop(0)()
    load_wo(12); load_wo(0)
    if LATE:
        vm.wait("m1")
        stage1(); stamp(a, 'A', 'U stored')
        fs_gen()
        vm.wait("wo"); signal(a, C_WO, vSM, vOne); stamp(a, 'A', 'wo landed')
        vm.wait("u"); u_flag()
    def u_phase():
        if not LATE:
            a("s_waitcnt vmcnt(0)"); signal(a, C_WO, vSM, vOne); vm.q = []
            stamp(a, 'A', 'wo landed')
        lp = L("pu")
        a(f"s_cmp_lg_u32 s{sWV}, 0\ns_cbranch_scc1 {lp}w")
        a(f"s_lshl_b32 s{sT1}, s{sQ2}, 13\ns_add_u32 s{sT1}, s{sT1}, {W_FU}\nv_lshlrev_b32 v1, 7, v0")
        gpoll(a, 62, 1, sT1, vNon)
        signal(a, C_UF, vSM, vOne)
        a(f"s_branch {lp}x\n{lp}w:")
        lwait(a, C_UF, vSM, vT, n=1)
        a(f"{lp}x:")
        UL = 192
        a(f"s_lshl_b32 s{sT1}, s{sCL}, 2\ns_add_u32 s{sT1}, s{sT1}, s{sQ2}\ns_lshl_b32 s{sT1}, s{sT1}, 2\ns_add_u32 s{sT1}, s{sT1}, s{sWV}\ns_lshl_b32 s{sT1}, s{sT1}, 13\ns_add_u32 s{sT1}, s{sT1}, {W_U}\ns_add_u32 s{sT2}, s{sT1}, 4096")
        for k in range(8):
            a(f"buffer_load_dwordx4 v[{UL+4*k}:{UL+4*k+3}], v{vL16}, {srd(S_WS)}, s{sT1 if k < 4 else sT2} offen offset:{1024*(k&3)} sc1")
        stamp(a, 'A', 'U asked')
        a(f"s_lshl_b32 s{sT1}, s{sWV}, 13\ns_add_u32 s{sT1}, s{sT1}, {UT}\nv_add_u32 v62, s{sT1}, v{vL16}")
        aU = 63
        a(f"v_lshrrev_b32 v1, 4, v0\nv_bfe_u32 v{vT}, v0, 2, 2\nv_lshl_add_u32 v{vT2}, v1, 3, v{vT}\nv_lshlrev_b32 v{aU}, 7, v{vT2}")
        a(f"v_and_b32 v1, 1, v1\nv_lshlrev_b32 v1, 1, v1\nv_lshrrev_b32 v{vT}, 1, v{vT}\nv_or_b32 v1, v1, v{vT}\nv_xor_b32 v1, s{sWV}, v1\nv_lshl_add_u32 v{aU}, v1, 5, v{aU}")
        a(f"v_and_b32 v1, 3, v0\nv_lshl_add_u32 v{aU}, v1, 3, v{aU}\nv_add_u32 v{aU}, {UT}, v{aU}")
        lwait(a, C_A1E, vSM, vT)
        def u_write(extra):
            for k in range(8):
                a(f"s_waitcnt vmcnt({7-k+extra})\nds_write_b128 v62, v[{UL+4*k}:{UL+4*k+3}] offset:{1024*k}")
            a("s_waitcnt lgkmcnt(0)"); signal(a, C_U, vSM, vOne)
        u_write(0)

    UL = 192; aU = 63
    if not LATE: u_phase()
    OR_ = 128
    lwait(a, C_O, vSM, vT)
    def o_issue(p):
        for k in range(2):
            r = OR_ + 8*p + 4*k
            a(f"buffer_load_dwordx4 v[{r}:{r+3}], v{vL16}, {srd(S_WS)}, s{sOL if p < 2 else sOL2} offen offset:{2048*(p&1)+1024*k} sc1")
    def o_consume(p):
        for k in range(2):
            r = OR_ + 8*p + 4*k
            a(f"v_and_b32 v{r+3}, s{sLO_}, v{r+3}\nds_write_b128 v{vOW}, v[{r}:{r+3}] offset:{2048*p+1024*k}")
    vYW, vYR, vD, vM, vE0 = 48, 52, 53, 54, 55
    def y_addr():
        a(f"v_and_b32 v1, 15, v0\nv_lshlrev_b32 v{vYW}, 8, v1\nv_and_b32 v1, 7, v1\nv_lshrrev_b32 v{vT}, 5, v0\ns_lshl_b32 s{sT0}, s{sWV}, 1\nv_add_u32 v{vT}, s{sT0}, v{vT}\nv_xor_b32 v{vT}, v{vT}, v1")
        a(f"v_lshl_add_u32 v{vYW}, v{vT}, 4, v{vYW}\nv_bfe_u32 v{vT}, v0, 4, 1\nv_lshl_add_u32 v{vYW}, v{vT}, 3, v{vYW}\nv_add_u32 v{vYW}, {YST}, v{vYW}\nv_xor_b32 v{vYW+1}, {128 + 7*16 + 8}, v{vYW}")
        a(f"v_lshrrev_b32 v1, 3, v0\nv_and_b32 v{vT}, 7, v0\nv_xor_b32 v{vT2}, v{vT}, v1\nv_lshlrev_b32 v{vYR}, 8, v1\nv_lshl_add_u32 v{vYR}, v{vT2}, 4, v{vYR}\ns_lshl_b32 s{sT0}, s{sWV}, 11\ns_add_u32 s{sT0}, s{sT0}, {YST}\nv_add_u32 v{vYR}, s{sT0}, v{vYR}")
        a(f"v_readfirstlane_b32 s{sT0}, v{vTT}\ns_and_b32 s{sT4}, s{sWV}, 1\ns_lshl_b32 s{sT4}, s{sT4}, 8\ns_add_u32 s{sT0}, s{sT0}, s{sT4}\nv_lshl_add_u32 v1, v1, 5, s{sT0}")
        a(f"v_sub_u32 v{vT2}, 2048, v1\ns_cmp_ge_u32 s{sWV}, 2\ns_cselect_b64 vcc, -1, 0\nv_cndmask_b32 v1, v1, v{vT2}, vcc\nv_mul_u32_u24 v1, 1792, v1")
        a(f"v_lshl_add_u32 v1, v{vT}, 4, v1\ns_lshl_b32 s{sT0}, s{sQ2}, 7\nv_add_u32 v{vD}, s{sT0}, v1\ns_sub_u32 s{sT0}, 770, s{sT0}\nv_add_u32 v{vM}, s{sT0}, v1")
    def o_between():
        stamp(a, 'A', 'o asked')
        y_addr()
        lwait(a, C_WOR, vSM, vT)
    gather(4, lambda p: OR_ + 8*p, o_issue, o_consume, o_between, 22)
    a("s_waitcnt lgkmcnt(0)"); signal(a, C_B3, vSM, vOne)
    stamp(a, 'A', 'o ready')
    if LATE: u_phase()
    lwait(a, C_U, vSM, vT)
    AF = 168
    for bc in range(4):
        for ks in range(2):
            for sec in range(2):
                r = AF + 8*bc + 4*ks + 2*sec
                a(f"ds_read_b64_tr_b16 v[{r}:{r+1}], v{aU} offset:{bc*8192+ks*4096+sec*512}")
    PA, QA, ZA = 64, 68, 72
    lg = L("cls")
    a(f"s_cmp_lg_u32 s{sCL}, 0\ns_cbranch_scc1 {lg}g")
    a(f"s_waitcnt lgkmcnt(0)\ns_cmp_lt_u32 s{sTQ}, 2\ns_cbranch_scc1 {lg}h")
    mfma16(a, PA, AF, FR); mfma16(a, QA, AF+16, FI); mfma16(a, PA, AF+4, FR+4, PA); mfma16(a, QA, AF+20, FI+4, QA)
    a(f"s_branch {lg}x\n{lg}h:")
    mfma16(a, PA, AF+8, FR); mfma16(a, QA, AF+24, FI); mfma16(a, PA, AF+12, FR+4, PA); mfma16(a, QA, AF+28, FI+4, QA)
    a(f"s_branch {lg}x\n{lg}g:")
    a("s_waitcnt lgkmcnt(12)"); mfma16(a, PA, AF, FR); mfma16(a, PA, AF+4, FR+4, PA)
    a("s_waitcnt lgkmcnt(8)"); mfma16(a, PA, AF+8, NFI, PA); mfma16(a, PA, AF+12, NFI+4, PA)
    a("s_waitcnt lgkmcnt(4)"); mfma16(a, QA, AF+16, FI); mfma16(a, QA, AF+20, FI+4, QA)
    a("s_waitcnt lgkmcnt(0)"); mfma16(a, QA, AF+24, FR, QA); mfma16(a, QA, AF+28, FR+4, QA)
    a(f"{lg}x:\ns_nop 7")
    MM, PP = 76, 80
    for r in range(4): a(f"v_sub_f32 v{MM+r}, v{PA+r}, v{QA+r}\nv_add_f32 v{PP+r}, v{PA+r}, v{QA+r}")
    a(f"v_cvt_pk_bf16_f32 v84, v{MM}, v{MM+1}\nv_cvt_pk_bf16_f32 v85, v{MM+2}, v{MM+3}\nv_cvt_pk_bf16_f32 v86, v{PP}, v{PP+1}\nv_cvt_pk_bf16_f32 v87, v{PP+2}, v{PP+3}")
    a(f"v_cvt_pk_bf16_f32 v88, v{MM+3}, v{MM+2}\nv_cvt_pk_bf16_f32 v89, v{MM+1}, v{MM}\nv_cvt_pk_bf16_f32 v90, v{PP+3}, v{PP+2}\nv_cvt_pk_bf16_f32 v91, v{PP+1}, v{PP}")
    a(f"ds_write_b64 v{vYW}, v[84:85]\nds_write_b64 v{vYW}, v[86:87] offset:4096\nds_write_b64 v{vYW+1}, v[90:91]\nds_write_b64 v{vYW+1}, v[88:89] offset:4096")
    a("s_waitcnt lgkmcnt(0)"); signal(a, C_Y, vSM, vOne)
    lz = L("z")
    a(f"s_or_b32 s{sT0}, s{sCL}, s{sTQ}\ns_cmp_lg_u32 s{sT0}, 0\ns_cbranch_scc1 {lz}")
    for j in range(4): a(f"v_mov_b32 v{NFI+j}, 0x3f803f80")
    mfma16(a, ZA, AF, NFI); mfma16(a, ZA, AF+4, NFI, ZA)
    a(f"s_lshl_b32 s{sT1}, s{sQ2}, 6\ns_lshl_b32 s{sT2}, s{sWV}, 4\ns_add_u32 s{sT1}, s{sT1}, s{sT2}\nv_lshrrev_b32 v1, 4, v0\nv_lshl_add_u32 v{vE0}, v1, 2, s{sT1}")
    a(f"s_mov_b32 s14, 0x00010001\ns_mov_b32 s15, 0x00010001\ns_movk_i32 s{sT1}, 220\ns_movk_i32 s{sT2}, 224")
    a(f"v_cmp_ge_u32 s[8:9], s{sT1}, v{vE0}\nv_cmp_lt_u32 vcc, 0, v{vE0}\ns_and_b64 s[8:9], s[8:9], s[14:15]\ns_and_b64 s[10:11], s[8:9], vcc\nv_cmp_eq_u32 s[12:13], s{sT2}, v{vE0}\ns_and_b64 s[12:13], s[12:13], s[14:15]")
    a(f"v_lshlrev_b32 v56, 1, v{vE0}\nv_sub_u32 v57, {2*445}, v56")
    a(f"v_cvt_pk_bf16_f32 v92, v{ZA}, v{ZA+1}\nv_cvt_pk_bf16_f32 v93, v{ZA+2}, v{ZA+3}\nv_cvt_pk_bf16_f32 v94, v{ZA+3}, v{ZA}\nv_cvt_pk_bf16_f32 v95, v{ZA+2}, v{ZA+1}")
    a(f"s_mov_b64 exec, s[8:9]\nbuffer_store_dwordx2 v[92:93], v56, {srd(S_OUT)}, 0 offen\nbuffer_store_short v94, v57, {srd(S_OUT)}, 0 offen\nbuffer_store_dword v95, v57, {srd(S_OUT)}, 0 offen offset:2")
    a(f"s_mov_b64 exec, s[10:11]\nbuffer_store_short_d16_hi v94, v57, {srd(S_OUT)}, 0 offen offset:6")
    a(f"s_mov_b64 exec, s[12:13]\nbuffer_store_short v92, v56, {srd(S_OUT)}, 0 offen\ns_mov_b64 exec, -1")
    a(f"{lz}:")
    lwait(a, C_Y, vSM, vT)
    a(f"ds_read_b128 v[84:87], v{vYR}\nds_read_b128 v[88:91], v{vYR} offset:128")
    ly = L("y")
    a(f"s_cmp_eq_u32 s{sQ2}, 3\ns_cbranch_scc1 {ly}3\ns_waitcnt lgkmcnt(1)\nbuffer_store_dwordx4 v[84:87], v{vD}, {srd(S_OUT)}, 0 offen")
    a(f"s_waitcnt lgkmcnt(0)\ns_cmp_eq_u32 s{sQ2}, 0\ns_cbranch_scc1 {ly}0\nbuffer_store_dwordx4 v[88:91], v{vM}, {srd(S_OUT)}, 0 offen\ns_branch {ly}x")
    a(f"{ly}0:\ns_mov_b32 exec_lo, 0x7f7f7f7f\ns_mov_b32 exec_hi, 0x7f7f7f7f\nbuffer_store_dwordx4 v[88:91], v{vM}, {srd(S_OUT)}, 0 offen")
    a(f"s_mov_b32 exec_lo, 0x80808080\ns_mov_b32 exec_hi, 0x80808080\nbuffer_store_dwordx3 v[88:90], v{vM}, {srd(S_OUT)}, 0 offen\nbuffer_store_short v91, v{vM}, {srd(S_OUT)}, 0 offen offset:12\ns_branch {ly}x")
    a(f"{ly}3:\ns_waitcnt lgkmcnt(0)\ns_mov_b32 exec_lo, 0x0f0f0f0f\ns_mov_b32 exec_hi, 0x0f0f0f0f\nbuffer_store_dwordx4 v[84:87], v{vD}, {srd(S_OUT)}, 0 offen")
    a(f"s_mov_b32 exec_lo, 0x10101010\ns_mov_b32 exec_hi, 0x10101010\nbuffer_store_short v84, v{vD}, {srd(S_OUT)}, 0 offen")
    a(f"s_mov_b32 exec_lo, 0xf0f0f0f0\ns_mov_b32 exec_hi, 0xf0f0f0f0\nbuffer_store_dwordx4 v[88:91], v{vM}, {srd(S_OUT)}, 0 offen")
    a(f"{ly}x:\ns_mov_b64 exec, -1")
    stamp(a, 'A', 'A2 done')
    stamps_out(a, 'A')
    a("s_endpgm")

def softmax(a, P, E, T, PHp, PHm):
    idx = [0,1,2,3,4,5,6,8,9,10,11,12,13,14]
    prs = [0,2,4,8,10,12]
    if OPT['mimic']:
        for k in range(7): a(f"v_cvt_pk_bf16_f32 v{E+k}, v{P+idx[2*k]}, v{P+idx[2*k+1]}")
        for k in range(7): a(f"v_lshlrev_b32 v{P+idx[2*k]}, 16, v{E+k}\nv_and_b32 v{P+idx[2*k+1]}, s{sMASK}, v{E+k}")
    mx, mn, t1, t2 = T, T+2, T+1, T+3
    a(f"v_max3_f32 v{mx}, v{P+idx[0]}, v{P+idx[1]}, v{P+idx[2]}\nv_min3_f32 v{mn}, v{P+idx[0]}, v{P+idx[1]}, v{P+idx[2]}")
    for k in range(3, 13, 2):
        a(f"v_max3_f32 v{mx}, v{mx}, v{P+idx[k]}, v{P+idx[k+1]}\nv_min3_f32 v{mn}, v{mn}, v{P+idx[k]}, v{P+idx[k+1]}")
    a(f"v_max_f32 v{mx}, v{mx}, v{P+idx[13]}\nv_min_f32 v{mn}, v{mn}, v{P+idx[13]}")
    a(f"v_mov_b32 v{t1}, v{mx}\nv_mov_b32 v{t2}, v{mn}")
    a(f"v_permlane32_swap_b32 v{mx}, v{t1}\nv_permlane32_swap_b32 v{mn}, v{t2}")
    a(f"v_max_f32 v{mx}, v{mx}, v{t1}\nv_min_f32 v{mn}, v{mn}, v{t2}")
    a(f"v_mul_f32 v{mx}, s{sNL}, v{mx}\nv_mul_f32 v{mn}, s{sL}, v{mn}")
    for i in prs:
        a(f"v_pk_fma_f32 v[{E+i}:{E+i+1}], v[{P+i}:{P+i+1}], s[{sL}:{sL+1}], v[{mx}:{mx+1}] op_sel_hi:[1,0,0]")
        a(f"v_pk_fma_f32 v[{P+i}:{P+i+1}], v[{P+i}:{P+i+1}], s[{sL}:{sL+1}], v[{mn}:{mn+1}] op_sel:[0,1,0] op_sel_hi:[1,1,0]")
    for i in (6, 14): a(f"v_fma_f32 v{E+i}, v{P+i}, s{sL}, v{mx}\nv_fma_f32 v{P+i}, v{P+i}, s{sNL}, v{mn}")
    for i in idx: a(f"v_exp_f32 v{E+i}, v{E+i}\nv_exp_f32 v{P+i}, v{P+i}")
    sp, sm = T+4, T+6
    a(f"v_pk_add_f32 v[{sp}:{sp+1}], v[{E}:{E+1}], v[{E+2}:{E+3}]\nv_pk_add_f32 v[{sm}:{sm+1}], v[{P}:{P+1}], v[{P+2}:{P+3}]")
    for i in prs[2:]: a(f"v_pk_add_f32 v[{sp}:{sp+1}], v[{sp}:{sp+1}], v[{E+i}:{E+i+1}]\nv_pk_add_f32 v[{sm}:{sm+1}], v[{sm}:{sm+1}], v[{P+i}:{P+i+1}]")
    a(f"v_add_f32 v{sp}, v{sp}, v{E+6}\nv_add_f32 v{sm}, v{sm}, v{P+6}\nv_add_f32 v{sp+1}, v{sp+1}, v{E+14}\nv_add_f32 v{sm+1}, v{sm+1}, v{P+14}")
    a(f"v_add_f32 v{sp}, v{sp}, v{sp+1}\nv_add_f32 v{sm}, v{sm}, v{sm+1}")
    a(f"v_mov_b32 v{t1}, v{sp}\nv_mov_b32 v{t2}, v{sm}")
    a(f"v_permlane32_swap_b32 v{sp}, v{t1}\nv_permlane32_swap_b32 v{sm}, v{t2}")
    a(f"v_add_f32 v{sp}, v{sp}, v{t1}\nv_add_f32 v{sm}, v{sm}, v{t2}")
    a(f"v_rcp_f32 v{sp}, v{sp}\nv_rcp_f32 v{sm}, v{sm}")
    for i in prs:
        a(f"v_pk_mul_f32 v[{E+i}:{E+i+1}], v[{E+i}:{E+i+1}], v[{sp}:{sp+1}] op_sel_hi:[1,0]")
        a(f"v_pk_mul_f32 v[{P+i}:{P+i+1}], v[{P+i}:{P+i+1}], v[{sm}:{sm+1}] op_sel_hi:[1,0]")
    for i in (6, 14): a(f"v_mul_f32 v{E+i}, v{E+i}, v{sp}\nv_mul_f32 v{P+i}, v{P+i}, v{sm}")
    for k in range(8):
        hi_e = f"v{E+2*k+1}" if (2*k+1) not in (7, 15) else "0"
        hi_p = f"v{P+2*k+1}" if (2*k+1) not in (7, 15) else "0"
        a(f"v_cvt_pk_bf16_f32 v{PHp+k}, v{E+2*k}, {hi_e}\nv_cvt_pk_bf16_f32 v{PHm+k}, v{P+2*k}, {hi_p}")

sPS, sF1, sF1S, sPL, sOS, sF2S, sG, sOL, sF2, sOUT, sCG = 92, 93, 94, 95, 96, 97, 98, 99, 100, 101, 3
def SCALARS(a):
    a(f"s_lshl_b32 s{sPS}, s{sH}, 4\ns_add_u32 s{sPS}, s{sPS}, s{sRB}\ns_lshl_b32 s{sPS}, s{sPS}, 2\ns_add_u32 s{sPS}, s{sPS}, s{sWV}\ns_lshl_b32 s{sPS}, s{sPS}, 10\ns_add_u32 s{sPS}, s{sPS}, {W_KVP}")
    a(f"s_lshl_b32 s{sOS}, s{sRB}, 2\ns_add_u32 s{sOS}, s{sOS}, s{sWV}\ns_lshl_b32 s{sOS}, s{sOS}, 4\ns_add_u32 s{sOS}, s{sOS}, s{sH}")
    a(f"s_lshl_b32 s{sOS}, s{sOS}, 11\ns_add_u32 s{sOS}, s{sOS}, {W_O}")
    a(f"s_lshl_b32 s{sG}, s{sXCD}, 3\ns_lshr_b32 s{sT0}, s{sI}, 2\ns_add_u32 s{sG}, s{sG}, s{sT0}")
    a(f"s_mul_i32 s{sOUT}, s{sG}, {32*1792}\ns_and_b32 s{sCG}, s{sI}, 3\ns_lshl_b32 s{sCG}, s{sCG}, 2\ns_add_u32 s{sCG}, s{sCG}, s{sWV}\ns_lshl_b32 s{sT0}, s{sCG}, 6\ns_add_u32 s{sOUT}, s{sOUT}, s{sT0}\ns_add_u32 s{sOUT}, s{sOUT}, 896")

def gen_B(a):
    a("LB:")
    a(f"s_getpc_b64 s[4:5]")
    l = L("pc"); a(f"{l}:")
    a(f"s_sub_u32 s4, s4, {l}-{NAME}_kernel\ns_subb_u32 s5, s5, 0")
    a(f"s_lshl_b32 s{sT0}, s{sWV}, 13\nv_lshl_add_u32 v1, v0, 7, s{sT0}\nv_min_u32 v1, LTAB-{NAME}_kernel+{T_END}-4, v1")
    a(f"global_load_dword v252, v1, s[4:5]")
    a(f"v_lshlrev_b32 v9, 4, v0\ns_and_b32 s{sT0}, s{sWV}, 1\ns_lshl_b32 s{sT0}, s{sT0}, 10\ns_add_u32 m0, s{sT0}, {PHI}\ns_mul_i32 s{sT1}, s{sH}, 1568\ns_add_u32 s{sT1}, s{sT1}, s{sT0}")
    a("s_waitcnt lgkmcnt(0)")
    mk_srd(a, S_PHI, 22, 16*1568)
    a(f"buffer_load_dwordx4 v9, {srd(S_PHI)}, s{sT1} offen lds")
    if OPT.get('tlb', 1):
        a(f"s_cmp_eq_u32 s{sWV}, 1\ns_cselect_b32 s4, s26, s30\ns_cselect_b32 s5, s27, s31\ns_cmp_eq_u32 s{sWV}, 2\ns_cselect_b32 s4, s8, s4\ns_cselect_b32 s5, s9, s5\ns_cmp_eq_u32 s{sWV}, 3\ns_cselect_b32 s4, s24, s4\ns_cselect_b32 s5, s25, s5")
        a(f"s_lshr_b32 s{sT0}, 3, s{sWV}\nv_min_u32 v1, s{sT0}, v0\nv_mul_u32_u24 v1, 0x200c00, v1\nv_and_b32 v1, 0xfffff000, v1\nv_add_u32 v1, 0x800, v1")
        a(f"global_load_dword v127, v1, s[4:5]")
    if OPT['stamps']:
        a(f"v_mov_b32 v{STV}, 0\nv_writelane_b32 v{STV}, s{ST0+2}, 0"); nst['B'] = 1
    vL16, vSM, vOne, vT, vT2, vNon = 9, 10, 11, 12, 13, 14
    aX0, aW0 = 2, 6
    AK, AV, WF, PHIF, X = 16, 32, 48, 80, 128
    ASEL, WOR, DM = 96, 100, 104
    vTag, vZ, vAcc = 107, 108, 109
    a(f"v_mov_b32 v{vZ}, 0")
    a(f"s_mov_b32 s{sL}, 0x3fb8aa3b\ns_mov_b32 s{sNL}, 0xbfb8aa3b\ns_mov_b32 s{sMASK}, 0xffff0000\ns_mov_b32 s{sLO}, 0xffff")
    vR, vHH = 7, 8
    a(f"v_and_b32 v{vR}, 31, v0\nv_lshrrev_b32 v{vHH}, 5, v0\nv_bfe_u32 v{vT}, v0, 1, 3")
    a(f"s_lshl_b32 s{sT0}, s{sWV}, 12\ns_add_u32 s{sT0}, s{sT0}, {XR0}")
    a(f"v_xor_b32 v{vT2}, v{vT}, v{vHH}\nv_lshlrev_b32 v{vT2}, 4, v{vT2}\nv_lshl_add_u32 v{vT2}, v{vR}, 7, v{vT2}\nv_add_u32 v{vT2}, s{sT0}, v{vT2}")
    for ks in range(4): a(f"v_xor_b32 v{aX0+ks}, {32*ks}, v{vT2}")
    aKW, aKA, aKB = 112, 116, 118
    a(f"s_lshl_b32 s{sT0}, s{sWV}, 12\ns_add_u32 s{sT0}, s{sT0}, {KVX}")
    a(f"v_xor_b32 v{vT2}, v{vT}, v{vHH}\nv_lshlrev_b32 v{vT2}, 3, v{vT2}\nv_lshl_add_u32 v{vT2}, v{vR}, 6, v{vT2}\nv_add_u32 v{vT2}, s{sT0}, v{vT2}")
    for k in range(4): a(f"v_xor_b32 v{aKW+k}, {16*k}, v{vT2}")
    vG, vR4, vCC = 122, 123, 124
    a(f"v_lshrrev_b32 v{vG}, 4, v0\nv_bfe_u32 v{vR4}, v0, 2, 2\nv_and_b32 v{vCC}, 3, v0")
    a(f"v_lshl_add_u32 v{vT2}, v{vHH}, 3, v{vR4}\nv_lshlrev_b32 v{vT2}, 6, v{vT2}\nv_lshl_add_u32 v{vT2}, v{vCC}, 3, v{vT2}\nv_and_b32 v{vT}, 1, v{vG}\nv_lshl_add_u32 v{aW0}, v{vT}, 5, v{vT2}")
    a(f"v_lshlrev_b32 v{vT}, 2, v{vT}\nv_lshrrev_b32 v{vT2}, 1, v{vR4}\nv_add_u32 v{vT}, v{vT}, v{vT2}\nv_xor_b32 v{vT}, v{vT}, v{vCC}\nv_lshlrev_b32 v{vT}, 3, v{vT}")
    a(f"v_lshl_add_u32 v{vT2}, v{vG}, 3, v{vR4}\nv_lshl_add_u32 v{vT}, v{vT2}, 6, v{vT}")
    a(f"v_add_u32 v{aKB}, {KVX+16384}, v{vT}\nv_add_u32 v{aKB+1}, 256, v{aKB}\nv_xor_b32 v{aKB+1}, 16, v{aKB+1}\nv_xor_b32 v{aKB+2}, 32, v{aKB}\nv_xor_b32 v{aKB+3}, 32, v{aKB+1}")
    a(f"s_and_b32 s{sT0}, s{sWV}, 1\ns_lshl_b32 s{sT0}, s{sT0}, 5\ns_lshr_b32 s{sT1}, s{sWV}, 1\ns_lshl_b32 s{sT1}, s{sT1}, 11\ns_sub_u32 s{sT1}, 16384, s{sT1}")
    for sec in range(2): a(f"v_xor_b32 v{aKA+sec}, s{sT0}, v{aKB+sec}\nv_subrev_u32 v{aKA+sec}, s{sT1}, v{aKA+sec}")
    vPS, vPL, vKFW, vKFR = 125, 126, 127, 105
    a(f"v_and_b32 v{vT}, 15, v0\nv_lshlrev_b32 v{vT}, 4, v{vT}\nv_and_b32 v{vT2}, 1, v{vG}\nv_lshl_add_u32 v{vT}, v{vT2}, 9, v{vT}")
    a(f"v_lshl_add_u32 v{vPS}, v{vHH}, 8, v{vT}")
    mk_srd(a, S_WS, 30, 0x10000000); mk_srd(a, S_OUT, 26, 2048*1792)
    SCALARS(a)
    def xread(c):
        for ks in range(4):
            a(f"ds_read_b128 v[{X+16*c+4*ks}:{X+16*c+4*ks+3}], v{aX0+ks} offset:{(c % 4)*SLOT}")
    a(f"v_lshrrev_b32 v{vT}, 4, v{vR}\nv_and_b32 v{vT2}, 15, v0\nv_add_u32 v{vT2}, 4, v{vT2}\nv_lshrrev_b32 v{vT2}, 4, v{vT2}\nv_lshl_add_u32 v{vT2}, v{vT}, 1, v{vT2}\nv_sub_u32 v{DM}, v{vR}, v{vT2}")
    a(f"v_and_b32 v{vT2}, 11, v0\nv_add_u32 v{vT}, 28, v{vT}\nv_cmp_eq_u32 vcc, 11, v{vT2}\nv_cndmask_b32 v{DM}, v{DM}, v{vT}, vcc")
    a(f"v_lshl_add_u32 v{WOR}, v{vHH}, 2, v{vR4}\nv_sub_u32 v{vT}, v{WOR}, v{vHH}\nv_add_u32 v{WOR+1}, 8, v{vT}\nv_add_u32 v{WOR+2}, 14, v{WOR}\nv_add_u32 v{WOR+3}, 22, v{vT}\nv_min_u32 v{WOR+3}, 27, v{WOR+3}")
    a(f"v_lshlrev_b32 v{vKFR}, 4, v{DM}\nv_lshl_add_u32 v{vKFR}, v{vHH}, 9, v{vKFR}\nv_add_u32 v{vKFR}, {KVF}, v{vKFR}")
    a(f"v_and_b32 v{vT2}, 1, v{vG}\nv_lshlrev_b32 v{vT2}, 5, v{vT2}\nv_lshl_add_u32 v{vT2}, v{vCC}, 3, v{vT2}")
    for k in range(4):
        a(f"v_and_b32 v{vT}, 3, v{WOR+k}\nv_xor_b32 v{vT}, s{sWV}, v{vT}\nv_lshl_add_u32 v{vT}, v{vT}, 6, v{vT2}\nv_lshl_add_u32 v{WOR+k}, v{WOR+k}, 8, v{vT}")
    aPH = 106
    a(f"v_min_u32 v{vT}, 27, v{DM}\nv_mul_u32_u24 v{vT2}, 224, v{vHH}\nv_lshl_add_u32 v{aPH}, v{vT}, 1, v{vT2}\nv_add_u32 v{aPH}, {PHI}, v{aPH}")
    AT = 88
    a(f"s_waitcnt vmcnt({1 if OPT.get('tlb', 1) else 0})")
    if OPT['prio']: a(f"s_setprio {OPT['prio']}")
    if OPT['lst']: stamp(a, 'B', 'setup')
    lq = []
    def lwait_tag(tag):
        if tag not in lq: return
        idx = max(i for i, t in enumerate(lq) if t == tag)
        a(f"s_waitcnt lgkmcnt({min(15, len(lq)-1-idx)})")
        del lq[:idx+1]
    for c in range(7):
        a("s_barrier")
        for ks in range(4):
            a(f"ds_read_b128 v[{X+16*c+4*ks}:{X+16*c+4*ks+3}], v{aX0+ks} offset:{(c % 4)*SLOT}")
            for sg in range(2):
                for sec in range(2):
                    r = WF + 8*ks + 4*sg + 2*sec
                    a(f"ds_read_b64_tr_b16 v[{r}:{r+1}], v{aW0} offset:{WKV + c*8192 + sg*4096 + ks*1024 + sec*256}")
            lq.extend([f"k{ks}"]*5)
        for ks in range(4):
            n = 4*c + ks
            lwait_tag(f"k{ks}")
            if n == 27: signal(a, C_G, vSM, vOne)
            mfma32(a, AK, WF+8*ks, X+4*n, AK if n else None)
            mfma32(a, AV, WF+8*ks+4, X+4*n, AV if n else None)
        if c == 0:
            for i in range(2):
                for jj in range(8):
                    a(f"ds_read_u16 v{240+8*i+jj}, v{aPH} offset:{(16*i + (jj & 3) + 8*(jj >> 2))*56}")
            a("s_waitcnt lgkmcnt(0)")
            for k in range(8): a(f"v_lshl_or_b32 v{PHIF+k}, v{241+2*k}, 16, v{240+2*k}")
            a(f"s_mov_b32 exec_lo, 0\nv_mov_b32 v{PHIF+6}, 0\nv_mov_b32 v{PHIF+7}, 0\ns_mov_b32 exec_lo, -1")
    stamp(a, 'B', 'gemm')
    if OPT.get('trunc'):
        stamps_out(a, 'B'); return
    KB = 48; VB = 56; E = 64; T = 88
    for j in range(8): a(f"v_cvt_pk_bf16_f32 v{KB+j}, v{AK+2*j}, v{AK+2*j+1}")
    mfma32(a, AK, PHIF, KB, None); mfma32(a, AK, PHIF+4, KB+4, AK)
    for j in range(8): a(f"v_cvt_pk_bf16_f32 v{VB+j}, v{AV+2*j}, v{AV+2*j+1}")
    a(f"s_mov_b32 exec_lo, 0\nv_mov_b32 v{VB+6}, 0x3f80\nv_mov_b32 v{VB+7}, 0\ns_mov_b32 exec_lo, -1")
    for k in range(4): a(f"ds_write_b64 v{aKW+k}, v[{VB+2*k}:{VB+2*k+1}] offset:16384")
    softmax(a, AK, E, T, 32, 40)
    for k in range(4):
        a(f"ds_write_b64 v{aKW+k}, v[{32+2*k}:{33+2*k}]\nds_write_b64 v{aKW+k}, v[{40+2*k}:{41+2*k}] offset:2048")
    a("s_waitcnt lgkmcnt(0)"); signal(a, C_B1, vSM, vOne)
    lwait(a, NONCE, vSM, vNon, n=1)
    a(f"s_mul_i32 s{sT1}, s{sT0}, 0x9e3779b1\nv_cmp_lt_u32 vcc, 1, v{vCC}\nv_mov_b32 v{vT}, s{sT1}\nv_and_b32 v{vT2}, 1, v0\nv_cndmask_b32 v{vT}, v{vNon}, v{vT}, vcc")
    a(f"v_lshlrev_b32 v{vT2}, 4, v{vT2}\nv_xor_b32 v{vT2}, 16, v{vT2}\nv_lshlrev_b32 v{vT}, v{vT2}, v{vT}\nv_and_b32 v{vTag}, 0xbfff0000, v{vT}")
    lwait(a, C_B1, vSM, vT)
    stamp(a, 'B', 'phik sync')
    FA, FB = 32, 48
    for ks in range(4):
        for sec in range(2): a(f"ds_read_b64_tr_b16 v[{FA+4*ks+2*sec}:{FA+4*ks+2*sec+1}], v{aKA+sec} offset:{4096*ks}")
        for dt in range(2):
            for sec in range(2):
                r = FB + 16*dt + 4*ks + 2*sec
                a(f"ds_read_b64_tr_b16 v[{r}:{r+1}], v{aKB+2*dt+sec} offset:{4096*ks}")
        if ks >= 2:
            k2 = ks - 2
            a(f"s_waitcnt lgkmcnt(12)")
            for dt in range(2): mfma16(a, 16+4*dt, FA+4*k2, FB+16*dt+4*k2, 16+4*dt if k2 else None)
    for k2 in (2, 3):
        a(f"s_waitcnt lgkmcnt({6*(3-k2)})")
        for dt in range(2): mfma16(a, 16+4*dt, FA+4*k2, FB+16*dt+4*k2, 16+4*dt)
    a(f"ds_read_b32 v{vT2}, v{vSM} offset:{C_WQ}")
    a(f"v_add_u32 v{AT}, {WQ}, v{aW0}")
    a(f"v_cvt_pk_bf16_f32 v24, v16, v17\nv_cvt_pk_bf16_f32 v25, v18, v19\nv_cvt_pk_bf16_f32 v26, v20, v21\nv_cvt_pk_bf16_f32 v27, v22, v23")
    a("v_permlane32_swap_b32 v24, v26\nv_permlane32_swap_b32 v25, v27")
    a(f"v_bfi_b32 v27, s{sLO}, v27, v{vTag}")
    a(f"buffer_store_dwordx4 v[24:27], v{vPS}, {srd(S_WS)}, s{sPS} offen sc1")
    signal(a, C_P, vSM, vOne)
    stamp(a, 'B', 'partial out')
    lq = L("wq")
    a(f"s_waitcnt lgkmcnt(1)\nv_readfirstlane_b32 s{sT0}, v{vT2}\ns_cmp_ge_u32 s{sT0}, 4\ns_cbranch_scc1 {lq}")
    lwait(a, C_WQ, vSM, vT2)
    a(f"{lq}:")
    AQ = 32
    NB = 6
    def wq_read(n):
        r = WF + 4*(n % 8)
        for sec in range(2): a(f"ds_read_b64_tr_b16 v[{r+2*sec}:{r+2*sec+1}], v{AT} offset:{n*1024+sec*256}")
    for n in range(NB): wq_read(n)
    for n in range(28):
        a(f"s_waitcnt lgkmcnt({2*min(NB-1, 27-n)})")
        mfma32(a, AQ, WF+4*(n % 8), X+4*n, AQ if n else None)
        if n + NB < 28: wq_read(n + NB)
    signal(a, C_QG, vSM, vOne)
    PHQp = 112; PHQm = 80
    for j in range(8): a(f"v_cvt_pk_bf16_f32 v{KB+j}, v{AQ+2*j}, v{AQ+2*j+1}")
    mfma32(a, AK, PHIF, KB, None); mfma32(a, AK, PHIF+4, KB+4, AK)
    stamp(a, 'B', 'q gemm')
    softmax(a, AK, E, T, PHQp, PHQm)
    stamp(a, 'B', 'phiq')
    lwait(a, C_B2, vSM, vT)
    stamp(a, 'B', 'kv sync')
    for p in range(4): a(f"ds_read_b128 v[{48+4*p}:{51+4*p}], v{vKFR} offset:{1024*p}")
    N = 16
    for p in range(4):
        a(f"s_waitcnt lgkmcnt({3-p})")
        mfma32(a, N, 48+4*p, (PHQp if p < 2 else PHQm) + 4*(p & 1), N if p else None)
    a(f"ds_read_b32 v{vT2}, v{vSM} offset:{C_WO}")
    a(f"v_add_f32 v{T}, 0x358637bd, v{N+7}\nv_rcp_f32 v{T}, v{T}")
    for i in [0,2,4,8,10,12]: a(f"v_pk_mul_f32 v[{N+i}:{N+i+1}], v[{N+i}:{N+i+1}], v[{T}:{T+1}] op_sel_hi:[1,0]")
    for i in (6, 14): a(f"v_mul_f32 v{N+i}, v{N+i}, v{T}")
    for k in range(8):
        hi = f"v{N+2*k+1}" if (2*k+1) not in (7, 15) else "0"
        a(f"v_cvt_pk_bf16_f32 v{32+k}, v{N+2*k}, {hi}")
        if k in (3, 7):
            a(f"v_or_b32 v{32+k}, v{32+k}, v{vTag}")
            a(f"buffer_store_dwordx4 v[{29+k}:{32+k}], v{vL16}, {srd(S_WS)}, s{sOS} offen offset:{1024*(k>>2)} sc1")
    signal(a, C_O, vSM, vOne)
    stamp(a, 'B', 'o out')
    WOF = 128
    def wo_reads(hs, delta):
        for h2 in hs:
            off = wobase(h2) - delta
            assert 0 <= off < 65536
            for i in range(2):
                for sec in range(2):
                    r = WOF + 8*h2 + 4*i + 2*sec
                    a(f"ds_read_b64_tr_b16 v[{r}:{r+1}], v{WOR+2*i+sec} offset:{off}")
    lq = L("wo")
    a(f"s_waitcnt lgkmcnt(1)\nv_readfirstlane_b32 s{sT0}, v{vT2}\ns_cmp_ge_u32 s{sT0}, 4\ns_cbranch_scc1 {lq}")
    lwait(a, C_WO, vSM, vT)
    a(f"{lq}:")
    stamp(a, 'B', 'wo landed')
    wo_reads(range(8), 0)
    for k in range(4): a(f"v_add_u32 v{WOR+k}, {XR0}, v{WOR+k}")
    wo_reads(range(8, 16), XR0)
    vO = 88
    a(f"v_mul_u32_u24 v{vO}, 1792, v{vR}\nv_lshl_add_u32 v{vO}, v{vHH}, 4, v{vO}")
    a("s_waitcnt lgkmcnt(0)"); signal(a, C_WOR, vSM, vOne)
    stamp(a, 'B', 'wo frags')
    a(f"s_cmp_ge_u32 s{sCG}, 14\ns_cbranch_scc1 LBX")
    lwait(a, C_B3, vSM, vT)
    stamp(a, 'B', 'o sync')
    OF = 48; NR = 8
    for n in range(NR): a(f"ds_read_b128 v[{OF+4*n}:{OF+4*n+3}], v{vL16} offset:{OB+1024*n}")
    for n in range(32):
        a(f"s_waitcnt lgkmcnt({min(NR-1, 31-n)})")
        mfma32(a, 16, WOF+4*n, OF+4*(n % NR), 16 if n else None)
        if n + NR < 32: a(f"ds_read_b128 v[{OF+4*(n%NR)}:{OF+4*(n%NR)+3}], v{vL16} offset:{OB+1024*(n+NR)}")
    for j in range(8): a(f"v_cvt_pk_bf16_f32 v{32+j}, v{16+2*j}, v{17+2*j}")
    a("v_permlane32_swap_b32 v32, v34\nv_permlane32_swap_b32 v33, v35\nv_permlane32_swap_b32 v36, v38\nv_permlane32_swap_b32 v37, v39")
    a(f"buffer_store_dwordx4 v[32:35], v{vO}, {srd(S_OUT)}, s{sOUT} offen")
    a(f"buffer_store_dwordx4 v[36:39], v{vO}, {srd(S_OUT)}, s{sOUT} offen offset:32")
    a("LBX:")
    stamp(a, 'B', 'end')
    stamps_out(a, 'B')

a = Asm()
prologue(a)
gen_A(a)
gen_B(a)
a("LEND:\ns_endpgm")
text = hz.fix(a.text())
tab, tn = tables()
text += "\n.p2align 8\nLTAB:\n" + tab + "\n"
src = make_file([(NAME+"_kernel", 256, 512, LDS_BYTES)], {NAME+"_kernel": (text, 256, 102, 256)}, single=True)
open(sys.argv[1], "w").write(src)
if OPT['stamps']:
    open(sys.argv[1] + ".names", "w").write("\n".join(names['B'] + ['']*(NSTAMP-len(names['B'])) + names['A'] + ['']*(NSTAMP-len(names['A']))))
print("stamps B", nst['B'], "A", nst['A'], "table bytes", tn, "src bytes", len(src))
```

```python
import sys, math, struct
from asmlib import *
import hz

OPT = dict(stamps=0, mimic=1, hpx=4, rot=1, prio=2, clk=0, ahead=3, lst=0, seq=3, wolate=0)
for x in sys.argv[2:]:
    k, v = x.split('='); OPT[k] = int(v) if v.lstrip('-').isdigit() else v

WKV = 0
WQ = 0
XR0 = 57344
SLOT = 16384
KVX = XR0
XP = 122880
STG = XP
UT = XP
SM = 155648
C_B1, C_B2, C_B3, C_WOR, C_WQ, C_WO, C_QG, C_U, C_G, C_A1E, C_P, NONCE, C_XP, C_A1D, C_O, C_Y, C_UA, C_QH, C_PL = [4*i for i in range(19)]
YST = 32768
PHI = SM + 256
KVF = SM + 4096
OB = 0
WOA, WOB = 28672, XR0 + 2*SLOT
def wobase(h): return WOA + 3584*h if h < 8 else WOB + 3584*(h-8)
OB0, OB1, OB1X = XR0, 0, WOB + 28672
LDS_BYTES = 163840
W_KVP = 0x1000; W_O = 0x201000; W_U = 0x402000; W_FL = 0x180000
W_FU = W_FL; W_F1 = W_FL + 0x10000; W_F2 = W_FL + 0x30000
W_ST = 0x700000
W_WP = 0x700000
S_BX, S_W, S_AX, S_WO, S_WS, S_OUT, S_PHI, S_FR, S_FI, S_DBG = [32 + 4*i for i in range(10)]
sXCD, sI, sH, sRB, sWV, sROT, sBUD, sNON = 72, 73, 74, 75, 76, 77, 78, 79
sT0, sT1, sT2, sT3, sT4, sT5 = 80, 81, 82, 83, 84, 85
sL, sNL, sMASK, sLO = 86, 87, 88, 89
sTAB = 6
ST0 = 90
def srd(s): return f"s[{s}:{s+3}]"

class VM:
    def __init__(self, a): self.a = a; self.q = []
    def issue(self, tag, n=1): self.q += [tag]*n
    def wait(self, tag):
        if tag not in self.q: return
        idx = max(i for i, t in enumerate(self.q) if t == tag)
        n = len(self.q) - 1 - idx
        assert n <= 63
        self.a(f"s_waitcnt vmcnt({n})")
        self.q = self.q[idx+1:]
    def drain(self):
        self.a("s_waitcnt vmcnt(0)"); self.q = []

lab = [0]
def L(p):
    lab[0] += 1
    return f"L{p}_{lab[0]}"

nst = {'B': 0, 'A': 0}
names = {'B': ['start'], 'A': ['start']}
CLK = 's_memtime' if OPT['clk'] else 's_memrealtime'
STV = 15
NSTAMP = 24
def stamp(a, role, name=''):
    if not OPT['stamps']: return
    if OPT['stamps'] == 2 and name not in ('end', 'A2 done', 'o out', 'gemm', 'kv ready', 'U stored'): return
    i = nst[role]; nst[role] += 1; names[role].append(name)
    assert i < NSTAMP
    a(f"{CLK} s[{ST0}:{ST0+1}]\ns_waitcnt lgkmcnt(0)\nv_writelane_b32 v{STV}, s{ST0}, {i}")
def stamps_out(a, role):
    if not OPT['stamps']: return
    lx = L("st")
    a(f"s_cmp_lg_u32 s{sWV}, 0\ns_cbranch_scc1 {lx}")
    if OPT.get('dbgwg') is not None and role == OPT.get('dbgrole', 'B'):
        ly = L("dg")
        a(f"s_cmp_lg_u32 s2, {OPT['dbgwg']}\ns_cbranch_scc1 {ly}")
        a(f"v_mbcnt_lo_u32_b32 v1, -1, 0\nv_mbcnt_hi_u32_b32 v1, -1, v1\nv_lshlrev_b32 v1, 2, v1\nv_readlane_b32 s{sT0}, v{STV}, 0\ns_nop 3\nv_subrev_u32 v2, s{sT0}, v{STV}")
        a(f"s_mov_b64 exec, 0xfffe\nglobal_store_dword v1, v2, s[28:29]\ns_mov_b64 exec, -1\n{ly}:")
    a(f"v_mbcnt_lo_u32_b32 v1, -1, 0\nv_mbcnt_hi_u32_b32 v1, -1, v1\nv_lshlrev_b32 v1, 3, v1")
    a(f"s_mul_i32 s{sT0}, s2, {2*NSTAMP*8}\ns_add_u32 s{sT0}, s{sT0}, {W_ST + (NSTAMP*8 if role == 'A' else 0)}")
    a(f"v_mov_b32 v2, v{STV}\nv_mov_b32 v3, 0")
    a(f"s_mov_b64 exec, 0xffffff")
    a(f"buffer_store_dwordx2 v[2:3], v1, {srd(S_WS)}, s{sT0} offen")
    a(f"{lx}:")

def signal(a, cnt, vSM, vOne):
    a("s_mov_b64 exec, 1")
    a(f"ds_add_u32 v{vSM}, v{vOne} offset:{cnt}")
    a("s_mov_b64 exec, -1")
def lwait(a, cnt, vSM, vT, n=4):
    l = L("w")
    a(f"{l}:")
    a(f"ds_read_b32 v{vT}, v{vSM} offset:{cnt}")
    a(f"s_sub_u32 s{sBUD}, s{sBUD}, 1\ns_cbranch_scc1 LEND")
    a("s_waitcnt lgkmcnt(0)")
    a(f"v_readfirstlane_b32 s{sT0}, v{vT}")
    a(f"s_cmp_ge_u32 s{sT0}, {n}\ns_cbranch_scc0 {l}")
def gpoll(a, vDst, vAddr, sOff, vNon):
    lp = L("gp")
    a(f"{lp}:\nbuffer_load_dword v{vDst}, v{vAddr}, {srd(S_WS)}, s{sOff} offen sc1")
    a(f"s_sub_u32 s{sBUD}, s{sBUD}, 4\ns_cbranch_scc1 LEND")
    a(f"s_waitcnt vmcnt(0)\nv_cmp_ne_u32 vcc, v{vDst}, v{vNon}\ns_cbranch_vccnz {lp}")

def mfma32(a, d, A, B, c=None):
    cs = f"v[{c}:{c+15}]" if c is not None else "0"
    a(f"v_mfma_f32_32x32x16_bf16 v[{d}:{d+15}], v[{A}:{A+3}], v[{B}:{B+3}], {cs}")
def mfma16(a, d, A, B, c=None):
    cs = f"v[{c}:{c+3}]" if c is not None else "0"
    a(f"v_mfma_f32_16x16x32_bf16 v[{d}:{d+3}], v[{A}:{A+3}], v[{B}:{B+3}], {cs}")

def dmap(m):
    if m in (11, 15): return 28
    if m in (27, 31): return 29
    return m - (m > 11) - (m > 15) - (m > 27)

def bf16(x):
    u = struct.unpack('<I', struct.pack('<f', x))[0]
    return ((u + 0x7FFF + ((u >> 16) & 1)) >> 16) & 0xFFFF
def f32(x): return struct.unpack('<I', struct.pack('<f', x))[0]

T_M1 = 0; T_END = T_M1 + 2048
def tables():
    w = []
    for i in range(2):
        for l in range(64):
            j, hh = l & 31, l >> 5
            c, comp = j >> 1, j & 1
            vals = []
            for jj in range(8):
                s1 = 16*i + (jj & 3) + 8*(jj >> 2) + 4*hh
                if comp == 0: v = math.cos(2*math.pi*((c*s1) % 32)/32)
                elif c: v = -math.sin(2*math.pi*((c*s1) % 32)/32)
                else: v = math.cos(math.pi*s1)
                if abs(v) < 1e-9: v = 0.0
                vals.append(bf16(v))
            w += [vals[2*k] | (vals[2*k+1] << 16) for k in range(4)]
    out = []
    for i in range(0, len(w), 8):
        out.append(".long " + ",".join("0x%x" % x for x in w[i:i+8]))
    return "\n".join(out), 4*len(w)

def prologue(a):
    a("s_load_dwordx16 s[8:23], s[0:1], 0")
    a("s_load_dwordx8 s[24:31], s[0:1], 64")
    a("s_cmp_ge_u32 s2, 256\ns_cbranch_scc1 LEND")
    a(f"s_memrealtime s[{ST0}:{ST0+1}]")
    if OPT['stamps']:
        a(f"{CLK} s[{ST0+2}:{ST0+3}]")
    a("v_lshrrev_b32 v1, 6, v0\nv_and_b32 v0, 63, v0")
    a(f"v_mov_b32 v10, {SM}\nv_mov_b32 v11, 0\nv_lshl_add_u32 v2, v0, 2, v10\nds_write_b32 v2, v11\nv_mov_b32 v11, 1")
    a(f"s_and_b32 s{sXCD}, s2, 7\ns_lshr_b32 s{sI}, s2, 3")
    a(f"v_readfirstlane_b32 s{sWV}, v1")
    hpx = OPT['hpx']; lh = hpx.bit_length() - 1; lr_ = 5 - lh
    a(f"s_and_b32 s{sH}, s{sXCD}, {16//hpx - 1}\ns_lshl_b32 s{sH}, s{sH}, {lh}\ns_lshr_b32 s{sT0}, s{sI}, {lr_}\ns_add_u32 s{sH}, s{sH}, s{sT0}")
    a(f"s_lshr_b32 s{sRB}, s{sXCD}, {4-lh}\ns_lshl_b32 s{sRB}, s{sRB}, {lr_}\ns_and_b32 s{sT0}, s{sI}, {32//hpx - 1}\ns_add_u32 s{sRB}, s{sRB}, s{sT0}")
    a(f"s_lshl_b32 s{sROT}, s{sH}, 1\ns_add_u32 s{sROT}, s{sROT}, s{sRB}\ns_mul_i32 s{sT0}, s{sROT}, 37\ns_lshr_b32 s{sT0}, s{sT0}, 8\ns_mul_i32 s{sT0}, s{sT0}, 7\ns_sub_u32 s{sROT}, s{sROT}, s{sT0}")
    a(f"s_mov_b32 s{sBUD}, 0x200000")
    a(f"s_cmp_lt_u32 s{sWV}, 4\ns_cbranch_scc1 LB")
    a(f"s_sub_u32 s{sWV}, s{sWV}, 4")

def mk_srd(a, s, p, nbytes):
    a(f"s_mov_b32 s{s}, s{p}\ns_mov_b32 s{s+1}, s{p+1}\ns_mov_b32 s{s+2}, {nbytes}\ns_mov_b32 s{s+3}, 0x20000")

def table_base(a):
    a(f"s_getpc_b64 s[{sTAB}:{sTAB+1}]")
    l = L("pc")
    a(f"{l}:")
    a(f"s_add_u32 s{sTAB}, s{sTAB}, LTAB-{l}\ns_addc_u32 s{sTAB+1}, s{sTAB+1}, 0")

SEQS = {
 0: [[0, 1, 2, 3], [4, 5, 6]],
 1: [[0, 1], [2, 3], [4, 5, 6]],
 2: [[0, 1, 2], [3, 4, 5, 6]],
 3: [[0, 1, 2, 3, 4, 5, 6]],
}
SEQ = SEQS[OPT['seq']]

class Gather:
    def __init__(self, a, n, per, R, issue, consume, vH, vHA, sHO, vNon, vCK, vTag, sLO_, sMS, sGO, mark):
        self.__dict__.update(locals())
        self.all = (1 << n) - 1
    def poll(self):
        self.a(f"buffer_load_dword v{self.vH}, v{self.vHA}, {srd(S_WS)}, s{self.sHO} offen sc1")
    def ask(self, l):
        a = self.a
        if self.sHO is None: a(f"s_mov_b32 s{self.sGO}, s{self.sMS}")
        else: a(f"v_cmp_eq_u32 vcc, v{self.vH}, v{self.vNon}\ns_and_b32 s{self.sGO}, vcc_lo, s{self.sMS}")
        for p in range(self.n):
            a(f"s_bitcmp1_b32 s{self.sGO}, {p}\ns_cbranch_scc0 {l}i{p}")
            self.issue(p)
            a(f"{l}i{p}:")
    def take(self, l, counted):
        a = self.a
        for p in range(self.n):
            r = self.R(p)
            a(f"s_bitcmp1_b32 s{self.sGO}, {p}\ns_cbranch_scc0 {l}c{p}")
            if counted: a(f"s_waitcnt vmcnt({self.per*(self.n-1-p)})")
            a(f"v_bitop3_b32 v{self.vCK}, v{r+3}, v{r+7}, v{self.vTag} bitop3:0x7e")
            for k in range(2, self.per): a(f"v_bitop3_b32 v{self.vCK}, v{self.vCK}, v{r+4*k+3}, v{self.vTag} bitop3:0xf6")
            a(f"v_cmp_lt_u32 vcc, s{self.sLO_}, v{self.vCK}\ns_cbranch_vccnz {l}c{p}")
            self.consume(p)
            a(f"s_bitset0_b32 s{self.sMS}, {p}\n{l}c{p}:")
    def first_ask(self):
        self.l = L("ga")
        if self.sHO is None:
            self.a(f"s_mov_b32 s{self.sMS}, {self.all}\ns_mov_b32 s{self.sGO}, {self.all}")
            for p in range(self.n): self.issue(p)
            return
        self.a(f"s_mov_b32 s{self.sMS}, {self.all}\ns_waitcnt vmcnt(0)")
        self.ask(self.l + "a")
    def finish(self, fast=None, first=None):
        a = self.a; l = self.l
        if fast is not None:
            for p in range(self.n):
                r = self.R(p)
                a(f"s_waitcnt vmcnt({self.per*(self.n-1-p) + getattr(self, 'extra', 0)})")
                if not first: self.consume(p)
                if p == 0: a(f"v_bitop3_b32 v{self.vCK}, v{r+3}, v{r+7}, v{self.vTag} bitop3:0x7e")
                else: a(f"v_bitop3_b32 v{self.vCK}, v{self.vCK}, v{r+3}, v{self.vTag} bitop3:0xf6\nv_bitop3_b32 v{self.vCK}, v{self.vCK}, v{r+7}, v{self.vTag} bitop3:0xf6")
                if first: first(p)
            a(f"v_cmp_lt_u32 vcc, s{self.sLO_}, v{self.vCK}\ns_cbranch_vccz {l}x")
            fast()
            self.take(l + "b", False)
        else:
            a(f"s_cmp_eq_u32 s{self.sGO}, {self.all}\ns_cbranch_scc1 {l}f\ns_waitcnt vmcnt(0)\n{l}f:")
            self.take(l + "b", True)
        self.retry()
    def retry(self):
        a = self.a; l = self.l
        a(f"{l}r:\ns_cmp_eq_u32 s{self.sMS}, 0\ns_cbranch_scc1 {l}x")
        if OPT['stamps']: a(f"v_writelane_b32 v{STV}, s{sBUD}, {self.mark}")
        a(f"s_sleep {OPT.get('slp', 8)}")
        if self.sHO is not None: self.poll()
        a(f"s_sub_u32 s{sBUD}, s{sBUD}, 8\ns_cbranch_scc1 LEND\ns_waitcnt vmcnt(0)")
        self.ask(l + "d")
        a("s_waitcnt vmcnt(0)")
        self.take(l + "e", False)
        a(f"s_branch {l}r\n{l}x:")

def gen_A(a):
    vm = VM(a)
    vW = [2, 3]; vX = [4, 5, 6, 7]; vXP = 8; vL16 = 9; vSM = 10; vOne = 11; vT = 12; vNon = 13; vT2 = 14; vZ = 29
    sXO, sWO_ = sT1, sT2
    sCW, sCX = 89, 62
    sWD, sXB = 86, 63
    sS2, sQ = 5, 3
    sMW, sMX = 88, 87
    if OPT.get('aprio', 1): a(f"s_setprio {OPT.get('aprio', 1)}")
    a(f"v_lshrrev_b32 v{vT}, 3, v0\nv_mul_u32_u24 v{vX[0]}, 896, v{vT}")
    a(f"v_and_b32 v{vT2}, 7, v0\nv_lshrrev_b32 v1, 4, v0\nv_xor_b32 v{vT2}, v{vT2}, v1\nv_lshlrev_b32 v{vT2}, 4, v{vT2}")
    a(f"v_lshl_add_u32 v{vXP}, v{vX[0]}, 6, v{vT2}\nv_add_u32 v{vX[0]}, v{vX[0]}, v{vT2}")
    a(f"v_xor_b32 v{vX[1]}, 64, v{vX[0]}\nv_add_u32 v{vX[2]}, {2*6144}, v{vX[0]}\nv_add_u32 v{vX[3]}, {3*6144}, v{vX[1]}\nv_add_u32 v{vX[1]}, 6144, v{vX[1]}")
    a(f"s_lshl_b32 s{sXB}, s{sRB}, 2\ns_add_u32 s{sXB}, s{sXB}, s{sWV}\ns_mul_i32 s{sXB}, s{sXB}, {32*896}")
    a(f"s_mov_b32 s{sCX}, s{sROT}\ns_lshl_b32 s{sMX}, s{sWV}, 12\ns_add_u32 s{sMX}, s{sMX}, {XR0}")
    a(f"v_lshrrev_b32 v{vT}, 2, v0\nv_mul_u32_u24 v{vW[0]}, 2688, v{vT}\nv_and_b32 v{vT}, 3, v0\nv_lshl_add_u32 v{vW[0]}, v{vT}, 4, v{vW[0]}")
    a(f"v_add_u32 v{vW[1]}, {16*2688-1024}, v{vW[0]}")
    a(f"s_and_b32 s{sT0}, s{sWV}, 1\ns_mul_i32 s{sWD}, s{sT0}, {32*2688}\ns_lshr_b32 s{sT0}, s{sWV}, 1\ns_add_u32 s{sT0}, s{sT0}, 1\ns_mul_i32 s{sT0}, s{sT0}, 896")
    a(f"s_add_u32 s{sWD}, s{sWD}, s{sT0}\ns_mul_i32 s{sT0}, s{sH}, 56\ns_add_u32 s{sWD}, s{sWD}, s{sT0}")
    a(f"s_lshl_b32 s{sMW}, s{sWV}, 11\ns_mov_b32 s{sCW}, s{sROT}")
    a("s_waitcnt lgkmcnt(0)")
    mk_srd(a, S_BX, 18, 2048*896); mk_srd(a, S_W, 20, 448*2688)
    def xpart(i, part):
        a(f"s_lshl_b32 s{sXO}, s{sCX}, 7\ns_add_u32 s{sXO}, s{sXO}, s{sXB}")
        a(f"s_add_u32 m0, s{sMX}, {(i % 4)*SLOT}")
        if part != 0: a(f"s_add_u32 s{sCX}, s{sCX}, 1")
        else: a("s_nop 0")
        for k in {0: (0, 1), 1: (2, 3), 2: (0, 1, 2, 3)}[part]:
            a(f"buffer_load_dwordx4 v{vX[k]}, {srd(S_BX)}, s{sXO} offen offset:{1024*k} lds")
            vm.issue(f"c{i}")
        if part != 0: a(f"s_cmp_eq_u32 s{sCX}, 7\ns_cselect_b32 s{sCX}, 0, s{sCX}")
    def xchunk(i): xpart(i, 2)
    def wchunk(j):
        a(f"s_mul_i32 s{sWO_}, s{sCW}, {64*2688}\ns_add_u32 m0, s{sMW}, {WKV + j*8192}\ns_add_u32 s{sWO_}, s{sWO_}, s{sWD}")
        a(f"s_add_u32 s{sCW}, s{sCW}, 1")
        for k in range(2):
            a(f"buffer_load_dwordx4 v{vW[k]}, {srd(S_W)}, s{sWO_} offen offset:{1024*k} lds")
        a(f"s_cmp_eq_u32 s{sCW}, 7\ns_cselect_b32 s{sCW}, 0, s{sCW}")
        vm.issue(f"c{j}", 2)
    xchunk(0); wchunk(0)
    a(f"s_lshr_b32 s{sT0}, s{sI}, 2\ns_lshl_b32 s{sS2}, s{sXCD}, 3\ns_add_u32 s{sS2}, s{sS2}, s{sT0}\ns_and_b32 s{sQ}, s{sI}, 3")
    mk_srd(a, S_AX, 8, 2048*896)
    def load_m1(tag):
        a(f"global_load_dwordx4 v[20:23], v{vL16}, s[{sTAB}:{sTAB+1}] offset:{T_M1}")
        a(f"global_load_dwordx4 v[24:27], v{vL16}, s[{sTAB}:{sTAB+1}] offset:{T_M1+1024}")
        vm.issue(tag, 2)
    sXI, sXS = 69, 70
    def xp_steps():
        def step(n):
            def f():
                if n == 0:
                    a(f"s_and_b32 s{sT0}, s{sWV}, 1\ns_lshl_b32 s{sT0}, s{sT0}, 6\nv_xor_b32 v{vXP}, s{sT0}, v{vXP}")
                    a(f"s_lshl_b32 s{sXS}, s{sWV}, 9\ns_add_u32 s{sXS}, s{sXS}, s{sS2}\ns_mul_i32 s{sXS}, s{sXS}, 896\ns_lshl_b32 s{sXI}, s{sQ}, {1 if OPT.get('rot2', 1) else 31}\ns_and_b32 s{sXI}, s{sXI}, 7")
                else:
                    a(f"s_add_u32 s{sXI}, s{sXI}, 1\ns_cmp_eq_u32 s{sXI}, 7\ns_cselect_b32 s{sXI}, 0, s{sXI}")
                a(f"s_lshl_b32 s{sT0}, s{sXI}, 2\ns_add_u32 s{sT0}, s{sT0}, s{sWV}\ns_lshl_b32 s{sT0}, s{sT0}, 10\ns_add_u32 m0, s{sT0}, {XP}\ns_lshl_b32 s{sXO}, s{sXI}, 7\ns_add_u32 s{sXO}, s{sXO}, s{sXS}")
                a(f"buffer_load_dwordx4 v{vXP}, {srd(S_AX)}, s{sXO} offen lds")
                vm.issue("xp")
            return f
        return [step(n) for n in range(7)]
    def load_xp():
        for f in xp_steps(): f()
    a(f"v_lshlrev_b32 v{vL16}, 4, v0")
    table_base(a)
    XPOS = OPT.get('xpos', 10)
    if OPT['stamps']:
        a(f"v_mov_b32 v{STV}, 0\nv_writelane_b32 v{STV}, s{ST0+2}, 0"); nst['A'] = 1
    a(f"v_mov_b32 v{vZ}, 0")
    ln = L("non")
    a(f"s_or_b32 s{sT0}, s2, s{sWV}\ns_cmp_lg_u32 s{sT0}, 0\ns_cbranch_scc1 {ln}")
    a(f"s_or_b32 s{sT0}, s{ST0}, 1\nv_mov_b32 v{vT}, s{sT0}")
    a(f"s_mov_b64 exec, 1\nglobal_store_dword v{vZ}, v{vT}, s[28:29] sc1\ns_mov_b64 exec, -1")
    a(f"{ln}:")
    if OPT['lst']: stamp(a, 'A', 'first issued')
    def load_wq():
        a(f"s_mul_i32 s{sT5}, s{sWV}, {16*2688}\ns_mul_i32 s{sT0}, s{sH}, 56\ns_add_u32 s{sT5}, s{sT5}, s{sT0}\ns_lshl_b32 s{sT0}, s{sWV}, 10")
        a(f"s_add_u32 m0, s{sT0}, {WQ}\ns_mov_b32 s{sT4}, s{sROT}")
        for i in range(7):
            a(f"s_mul_i32 s{sWO_}, s{sT4}, {64*2688}\ns_add_u32 s{sWO_}, s{sWO_}, s{sT5}")
            a(f"buffer_load_dwordx4 v{vW[0]}, {srd(S_W)}, s{sWO_} offen lds")
            if i < 6:
                a(f"s_add_u32 m0, m0, 4096")
                a(f"s_add_u32 s{sT4}, s{sT4}, 1\ns_cmp_eq_u32 s{sT4}, 7\ns_cselect_b32 s{sT4}, 0, s{sT4}")
        vm.issue("wq", 7)
    FG = 128; GEN = 80; K2 = 96; vE = 98
    a(f"s_lshl_b32 s{sT0}, s{sQ}, 6\ns_and_b32 s{sT4}, s{sWV}, 1\ns_lshl_b32 s{sT4}, s{sT4}, 5\ns_add_u32 s{sT0}, s{sT0}, s{sT4}")
    a(f"v_and_b32 v{vE}, 31, v0\nv_add_u32 v{vE}, s{sT0}, v{vE}")
    a(f"s_cmp_lt_u32 s{sWV}, 2\ns_cselect_b32 s{sT4}, 0, 0x3e800000")
    a(f"s_mov_b32 s{sT5}, {hex(f32(1/448))}")
    a(f"v_cvt_f32_u32 v1, v{vE}\nv_mul_f32 v1, s{sT5}, v1\nv_sin_f32 v{vT}, v1\nv_cos_f32 v{vT2}, v1")
    a(f"v_lshrrev_b32 v99, 5, v0\nv_mul_u32_u24 v99, 224, v99\nv_add_u32 v99, 444, v99\nv_mul_u32_u24 v99, v99, v{vE}")
    a(f"v_mul_f32 v{vT}, v{vT}, v{vT}\nv_mul_f32 v{vT2}, v{vT2}, v{vT2}")
    a(f"v_cmp_lt_f32 vcc, v{vT}, v{vT2}\nv_fma_f32 v{vT}, v{vT}, -4.0, 2.0\nv_fma_f32 v{vT2}, v{vT2}, 4.0, -2.0\nv_cndmask_b32 v{K2}, v{vT2}, v{vT}, vcc")
    a(f"v_mov_b32 v100, s{sT4}")
    for k in range(4):
        r = GEN + 12 + k
        a(f"v_lshrrev_b32 v1, 6, v99\nv_mul_u32_u24 v1, 9363, v1\nv_lshrrev_b32 v1, 16, v1\nv_mul_u32_u24 v1, 448, v1\nv_sub_u32 v1, v99, v1")
        a(f"v_cvt_f32_u32 v1, v1\nv_fma_f32 v1, v1, s{sT5}, v100\nv_cos_f32 v{r}, v1")
        if k < 3: a(f"v_add_u32 v99, v99, v{vE}")
    lg_ = L("gen")
    a(f"s_mov_b32 s{sT0}, 0\n{lg_}:")
    p2, p1 = GEN+12, GEN+14
    for i in range(2):
        g = GEN + 8*i
        for j in range(4):
            d = g + 2*j
            a(f"v_pk_fma_f32 v[{d}:{d+1}], v[{K2}:{K2+1}], v[{p1}:{p1+1}], v[{p2}:{p2+1}] op_sel_hi:[0,1,1] neg_lo:[0,0,1] neg_hi:[0,0,1]")
            p2, p1 = p1, d
    a(f"s_set_gpr_idx_on s{sT0}, gpr_idx(DST)")
    for j in range(8): a(f"v_cvt_pk_bf16_f32 v{FG+j}, v{GEN+2*j}, v{GEN+2*j+1}")
    a(f"s_set_gpr_idx_off\ns_add_u32 s{sT0}, s{sT0}, 8\ns_cmp_lt_u32 s{sT0}, {OPT.get('genn', 112)}\ns_cbranch_scc1 {lg_}")
    if OPT['lst']: stamp(a, 'A', 'gen')
    mk_srd(a, S_WO, 24, 448*896); mk_srd(a, S_WS, 30, 0x10000000); mk_srd(a, S_OUT, 26, 2048*1792)
    aXP = 48
    a(f"v_and_b32 v1, 31, v0\nv_lshrrev_b32 v{vT2}, 5, v0\nv_bfe_u32 v{vT}, v0, 1, 3\nv_lshlrev_b32 v{vT2}, 2, v{vT2}\nv_xor_b32 v{vT}, v{vT}, v{vT2}")
    a(f"v_lshlrev_b32 v1, 7, v1\nv_lshl_add_u32 v1, v{vT}, 4, v1\nv_add_u32 v1, {XP}, v1")
    a(f"v_mul_u32_u24 v{vT2}, {3*1024}, v{vT2}\nv_add_u32 v1, v1, v{vT2}")
    a(f"v_lshrrev_b32 v{vT2}, 5, v0\nv_lshlrev_b32 v{vT2}, 12, v{vT2}")
    for k in range(8):
        a(f"v_xor_b32 v{aXP+k}, {16*k}, v1")
        if k >= 4: a(f"v_add_u32 v{aXP+k}, v{aXP+k}, v{vT2}")
    sCL, sQ2, sTQ, sUA, sUB, sUF = 64, 4, 65, 66, 67, 68
    vTT = 28; FR, FI, NFI = 32, 40, 240
    def fs_gen():
        a(f"s_lshr_b32 s{sCL}, s{sI}, 4\ns_lshl_b32 s{sT0}, s{sXCD}, 1\ns_add_u32 s{sCL}, s{sCL}, s{sT0}\ns_lshr_b32 s{sQ2}, s{sI}, 2\ns_and_b32 s{sQ2}, s{sQ2}, 3\ns_and_b32 s{sTQ}, s{sI}, 3")
        a(f"s_cmp_lt_u32 s{sTQ}, 2\ns_cselect_b32 s{sT4}, 16, -992\ns_cmp_eq_u32 s{sCL}, 0\ns_cselect_b32 s{sT4}, s{sT4}, s{sCL}")
        a(f"s_lshl_b32 s{sT0}, s{sTQ}, 9\ns_add_u32 s{sT0}, s{sT0}, s{sT4}")
        a(f"v_and_b32 v1, 15, v0\nv_lshlrev_b32 v1, 5, v1\nv_add_u32 v{vTT}, s{sT0}, v1")
        a(f"v_cvt_f32_u32 v30, v{vTT}\nv_mul_f32 v30, {hex(f32(1/2048))}, v30\nv_lshrrev_b32 v1, 4, v0\nv_lshlrev_b32 v1, 3, v1\nv_cvt_f32_u32 v1, v1\nv_mul_f32 v31, v30, v1")
        a(f"s_mov_b32 s{sT4}, 0x80008000\ns_mov_b32 s{sT0}, {hex(f32(24.0))}")
        for ks in range(2):
            if ks: a(f"v_fma_f32 v31, v30, s{sT0}, v31")
            for jp in range(4):
                a(f"v_cos_f32 v248, v31\nv_sin_f32 v250, -v31\nv_add_f32 v31, v31, v30\nv_cos_f32 v249, v31\nv_sin_f32 v251, -v31\nv_add_f32 v31, v31, v30")
                a(f"v_cvt_pk_bf16_f32 v{FR+4*ks+jp}, v248, v249\nv_cvt_pk_bf16_f32 v{FI+4*ks+jp}, v250, v251\nv_xor_b32 v{NFI+4*ks+jp}, s{sT4}, v{FI+4*ks+jp}")
    ACC, XR = 64, 96
    def a1_slice(i0_, i1_):
        n = i1_ - i0_
        for i in range(i0_, i1_):
            a(f"ds_read_b128 v[{XR+4*(i-i0_)}:{XR+4*(i-i0_)+3}], v{aXP+(i&7)} offset:{(i>>3)*4096}")
        for i in range(i0_, i1_):
            a(f"s_waitcnt lgkmcnt({i1_-1-i})")
            mfma32(a, ACC, XR+4*(i-i0_), FG+4*i, ACC if i else None)
    aSW, aSR, vUO = 56, 60, 61
    REST = None
    vWO = [16, 17, 18, 19]
    def u_addr():
        a(f"s_lshl_b32 s{sT0}, s{sWV}, 11\ns_add_u32 s{sT0}, s{sT0}, {STG}")
        a(f"v_and_b32 v1, 31, v0\nv_lshlrev_b32 v1, 6, v1\nv_bfe_u32 v{vT}, v0, 1, 2\nv_lshl_add_u32 v1, v{vT}, 4, v1\nv_lshrrev_b32 v{vT}, 5, v0\nv_lshl_add_u32 v1, v{vT}, 3, v1\nv_add_u32 v1, s{sT0}, v1")
        for k in range(4): a(f"v_xor_b32 v{aSW+k}, {16*k}, v1")
        a(f"v_bfe_u32 v{vT}, v0, 3, 2\nv_and_b32 v1, 3, v0\nv_xor_b32 v{vT}, v{vT}, v1\nv_lshrrev_b32 v{aSR}, 2, v0\nv_lshlrev_b32 v{aSR}, 6, v{aSR}\nv_lshl_add_u32 v{aSR}, v{vT}, 4, v{aSR}\nv_add_u32 v{aSR}, s{sT0}, v{aSR}")
        a(f"s_bfe_u32 s{sT0}, s{sS2}, 0x10001\ns_bfe_u32 s{sT4}, s{sS2}, 0x10003\ns_lshl_b32 s{sT4}, s{sT4}, 1\ns_or_b32 s{sT0}, s{sT0}, s{sT4}\ns_lshl_b32 s{sT0}, s{sT0}, 5")
        a(f"s_and_b32 s{sT4}, s{sWV}, 1\ns_lshl_b32 s{sT4}, s{sT4}, 6\ns_xor_b32 s{sT0}, s{sT0}, s{sT4}")
        a(f"v_lshlrev_b32 v1, 4, v1\nv_xor_b32 v1, s{sT0}, v1\nv_lshrrev_b32 v{vT}, 3, v0\nv_lshl_add_u32 v1, v{vT}, 17, v1\nv_bfe_u32 v{vT}, v0, 2, 1\nv_lshl_add_u32 v{vUO}, v{vT}, 13, v1")
        a(f"s_lshl_b32 s{sT0}, s{sQ}, 1\ns_lshr_b32 s{sT4}, s{sWV}, 1\ns_add_u32 s{sT0}, s{sT0}, s{sT4}")
        a(f"s_lshl_b32 s{sUA}, s{sT0}, 14\ns_lshl_b32 s{sT4}, s{sS2}, 7\ns_add_u32 s{sUA}, s{sUA}, s{sT4}\ns_add_u32 s{sUA}, s{sUA}, {W_U}\ns_add_u32 s{sUB}, s{sUA}, 0x100000")
        a(f"v_lshrrev_b32 v1, 3, v0\nv_bfe_u32 v{vT}, v0, 4, 1\nv_lshlrev_b32 v{vT}, 2, v{vT}\nv_and_b32 v{vT2}, 7, v0\nv_xor_b32 v{vT}, v{vT}, v{vT2}\nv_mul_u32_u24 v1, 896, v1\nv_lshl_add_u32 v{vWO[0]}, v{vT}, 4, v1")
    def stage1():
        for j in range(8): a(f"v_cvt_pk_bf16_f32 v{GEN+j}, v{ACC+2*j}, v{ACC+2*j+1}")
        mfma32(a, ACC, GEN, 20, None)
        mfma32(a, ACC, GEN+4, 24, ACC)
        lwait(a, C_A1D, vSM, vT)
        a("s_nop 7")
        for j in range(8): a(f"v_cvt_pk_bf16_f32 v{GEN+j}, v{ACC+2*j}, v{ACC+2*j+1}")
        for k in range(4): a(f"ds_write_b64 v{aSW+k}, v[{GEN+2*k}:{GEN+2*k+1}]")
        a("s_waitcnt lgkmcnt(0)")
        a(f"ds_read_b128 v[{XR}:{XR+3}], v{aSR}\nds_read_b128 v[{XR+4}:{XR+7}], v{aSR} offset:1024")
        a(f"v_and_b32 v1, 3, v0\nv_lshlrev_b32 v1, 3, v1\nv_lshrrev_b32 v1, v1, v{vNon}\ns_mov_b32 s{sT0}, 0x00010001")
        for k in range(4):
            a(f"v_bfe_u32 v{vT}, v1, {2*k}, 2\nv_mul_u32_u24 v{vT}, 0x8001, v{vT}\nv_and_b32 v{104+k}, s{sT0}, v{vT}")
        a("s_waitcnt lgkmcnt(0)")
        for k in range(8):
            a(f"v_lshrrev_b32 v{vT}, 1, v{XR+k}\nv_bitop3_b32 v{vT}, v{vT}, v{XR+k}, s{sT0} bitop3:0x80\nv_add_u32 v{XR+k}, v{XR+k}, v{vT}\nv_bfi_b32 v{XR+k}, s{sT0}, v{104+(k&3)}, v{XR+k}")
        a(f"buffer_store_dwordx4 v[{XR}:{XR+3}], v{vUO}, {srd(S_WS)}, s{sUA} offen sc1")
        a(f"buffer_store_dwordx4 v[{XR+4}:{XR+7}], v{vUO}, {srd(S_WS)}, s{sUB} offen sc1")
        vm.issue("u", 2)
        signal(a, C_A1E, vSM, vOne)
    def warm():
        lw = L("wm")
        a(f"s_cmp_lt_u32 s{sWV}, 2\ns_cbranch_scc1 {lw}a\ns_cmp_eq_u32 s{sWV}, 2\ns_cbranch_scc1 {lw}b")
        a(f"s_and_b32 s{sT0}, s{sRB}, 7\ns_mul_i32 s{sT0}, s{sT0}, {56*2688}\ns_mul_i32 s{sT4}, s{sH}, 56\ns_add_u32 s{sT0}, s{sT0}, s{sT4}")
        a(f"v_mul_u32_u24 v1, 2688, v0\nbuffer_load_dword v30, v1, {srd(S_W)}, s{sT0} offen\nbuffer_load_dword v31, v1, {srd(S_W)}, s{sT0} offen offset:52\ns_branch {lw}x")
        a(f"{lw}b:")
        a(f"v_lshrrev_b32 v1, 3, v0\nv_mul_u32_u24 v1, 896, v1\nv_lshlrev_b32 v1, 6, v1\nv_and_b32 v30, 7, v0\nv_min_u32 v30, 6, v30\nv_lshl_add_u32 v1, v30, 7, v1")
        a(f"s_lshl_b32 s{sT0}, s{sQ}, 9\ns_add_u32 s{sT0}, s{sT0}, s{sS2}\ns_mul_i32 s{sT0}, s{sT0}, 896")
        a(f"buffer_load_dword v30, v1, {srd(S_AX)}, s{sT0} offen\nbuffer_load_dword v31, v1, {srd(S_AX)}, s{sT0} offen\ns_branch {lw}x")
        a(f"{lw}a:")
        a(f"s_lshl_b32 s{sT0}, s{sI}, 1\ns_add_u32 s{sT0}, s{sT0}, s{sWV}\ns_mul_i32 s{sT0}, s{sT0}, {49*128}\nv_min_u32 v1, 48, v0\nv_lshlrev_b32 v1, 7, v1")
        a(f"buffer_load_dword v30, v1, {srd(S_WO)}, s{sT0} offen\nbuffer_load_dword v31, v1, {srd(S_WO)}, s{sT0} offen")
        a(f"{lw}x:")
        vm.issue("pf", 2)
    spf = []
    if OPT.get('spf', 0):
        sPA, sPB = 94, 96
        a(f"s_mul_i32 s{sT0}, s{sI}, 98\ns_mul_i32 s{sT4}, s{sWV}, 49\ns_lshr_b32 s{sT4}, s{sT4}, 1\ns_add_u32 s{sT0}, s{sT0}, s{sT4}\ns_lshl_b32 s{sT0}, s{sT0}, 7\ns_add_u32 s{sPA}, s24, s{sT0}\ns_addc_u32 s{sPA+1}, s25, 0")
        a(f"s_lshl_b32 s{sT0}, s{sQ}, 2\ns_add_u32 s{sT0}, s{sT0}, s{sWV}\ns_lshl_b32 s{sT0}, s{sT0}, 7\ns_add_u32 s{sT0}, s{sT0}, s{sS2}\ns_mul_i32 s{sT0}, s{sT0}, 896\ns_add_u32 s{sPB}, s8, s{sT0}\ns_addc_u32 s{sPB+1}, s9, 0")
        halves = (0, 64) if OPT.get('spf', 0) == 2 else (0,)
        spf += [f"s_load_dword s98, s[{sPB}:{sPB+1}], {r*57344 + k*128 + hf}" for r in range(2) for k in range(7) for hf in halves]
        spf += [f"s_load_dword s98, s[{sPA}:{sPA+1}], {k*128 + hf}" for k in range(25) for hf in halves]
    u_addr()
    if OPT['lst']: stamp(a, 'A', 'addr')
    def stream(halves):
        seq = []
        for c in range(1, 7): seq += [(wchunk, c), (lambda c_: xpart(c_, 0), c), (lambda c_: xpart(c_, 1), c)] if OPT.get('wf', 0) else [(lambda c_: xpart(c_, 0), c), (lambda c_: xpart(c_, 1), c), (wchunk, c)]
        pos = 0
        def upto(n):
            nonlocal pos
            while pos < min(n, len(seq)):
                f, c = seq[pos]; f(c); pos += 1
        upto(halves - 3)
        for c in range(7):
            vm.wait(f"c{c}")
            if c == 6: a("s_waitcnt lgkmcnt(0)")
            a("s_barrier")
            upto(3*c + halves)
            if c == 1: a(f"global_load_dword v{vNon}, v{vZ}, s[28:29] sc1"); vm.issue("non")
            if c == 5:
                vm.wait("non")
                lr = L("nr")
                a(f"{lr}:\nv_readfirstlane_b32 s{sNON}, v{vNon}\ns_cmp_lg_u32 s{sNON}, 0\ns_cbranch_scc1 {lr}x")
                a(f"s_sub_u32 s{sBUD}, s{sBUD}, 64\ns_cbranch_scc1 {lr}x")
                a(f"global_load_dword v{vNon}, v{vZ}, s[28:29] sc1\ns_waitcnt vmcnt(0)\ns_branch {lr}")
                a(f"{lr}x:")
                a(f"ds_write_b32 v{vSM}, v{vNon} offset:{NONCE}")
    HC, HN = OPT.get('hc', 6), OPT.get('hn', 4)
    if HC == HN: stream(HC)
    else:
        ls = L("cl")
        q0 = list(vm.q)
        a(f"s_lshr_b32 s{sT0}, 0xaa54, s{sH}\ns_bitcmp1_b32 s{sT0}, 0\ns_cbranch_scc1 {ls}")
        stream(HN)
        a(f"s_branch {ls}x\n{ls}:")
        vm.q = list(q0)
        stream(HC)
        a(f"{ls}x:")
    vm.q = []
    load_wq()
    if OPT.get('trunc'):
        a("s_waitcnt vmcnt(0)"); stamp(a, 'A', 'wq landed'); stamps_out(a, 'A'); a("s_endpgm"); return
    sWS, sWM = 60, 61
    LATE = 1
    sWI = 71
    def wo_steps():
        def step(n):
            def f():
                if n == 0:
                    a(f"s_mul_i32 s{sWS}, s{sWV}, 7168\ns_add_u32 s{sWM}, s{sWS}, {WOA}\ns_mul_i32 s{sWS}, s{sWS}, 7\ns_and_b32 s{sT0}, s{sI}, 7\ns_lshl_b32 s{sT0}, s{sT0}, 7\ns_add_u32 s{sWS}, s{sWS}, s{sT0}")
                    a(f"s_lshr_b32 s{sWI}, s{sI}, 3\ns_mul_i32 s{sWI}, s{sWI}, {7 if OPT.get('rot2', 1) else 0}\ns_lshr_b32 s{sWI}, s{sWI}, 1")
                else:
                    a(f"s_add_u32 s{sWI}, s{sWI}, 1\ns_cmp_eq_u32 s{sWI}, 14\ns_cselect_b32 s{sWI}, 0, s{sWI}")
                a(f"s_cmp_ge_u32 s{sWI}, 7\ns_cselect_b32 s{sT0}, 21, 0\ns_cselect_b32 s{sT4}, {WOB-WOA-7168}, 0\ns_add_u32 s{sT0}, s{sT0}, s{sWI}\ns_mul_i32 s{sT0}, s{sT0}, 7168\ns_add_u32 s{sT0}, s{sT0}, s{sWS}")
                a(f"s_add_u32 s{sT4}, s{sT4}, s{sWM}\ns_lshl_b32 s{sT5}, s{sWI}, 10\ns_add_u32 m0, s{sT4}, s{sT5}\ns_nop 0")
                a(f"buffer_load_dwordx4 v{vWO[0]}, {srd(S_WO)}, s{sT0} offen lds")
                vm.issue("wo")
            return f
        return [step(n) for n in range(14)]
    a("s_setprio 0")
    a(f"s_and_b32 s{sT0}, s{sI}, 7\ns_cmp_eq_u32 s{sT0}, 7\ns_cselect_b32 s{S_WO+2}, 0, s{S_WO+2}")
    vTag, vPL, vKFW, ASEL, vCK = 4, 5, 6, 124, 7
    sLO_, sPL, sMS, sGO = 86, 87, 88, 89
    KAS = [120, 108]
    PRL = [20, 32, 40, 240, 248, 80, 88, 112]
    xs = xp_steps() if XPOS == 10 else []
    wsx = wo_steps()
    for _ in range(OPT.get('x1', 2)):
        if xs: xs.pop(0)()
    a(f"s_mul_i32 s{sT0}, s{sNON}, 0x9e3779b1\nv_and_b32 v1, 3, v0\nv_cmp_lt_u32 vcc, 1, v1\nv_mov_b32 v{vT}, s{sT0}\nv_and_b32 v{vT2}, 1, v0\nv_cndmask_b32 v{vT}, v{vNon}, v{vT}, vcc")
    a(f"v_lshlrev_b32 v{vT2}, 4, v{vT2}\nv_xor_b32 v{vT2}, 16, v{vT2}\nv_lshlrev_b32 v{vT}, v{vT2}, v{vT}\nv_and_b32 v{vTag}, 0xbfff0000, v{vT}\ns_mov_b32 s{sLO_}, 0xffff")
    a(f"v_and_b32 v{vT}, 15, v0\nv_bfe_u32 v{vT2}, v0, 4, 1\nv_lshlrev_b32 v1, 4, v{vT}\nv_lshl_add_u32 v1, v{vT2}, 9, v1\nv_lshrrev_b32 v{vCK}, 5, v0")
    a(f"v_lshl_add_u32 v{vPL}, v{vCK}, 12, v1\nv_lshl_add_u32 v{vKFW}, v{vCK}, 3, v1\ns_lshl_b32 s{sT0}, s{sWV}, 10\ns_add_u32 s{sT4}, s{sT0}, {KVF}\nv_add_u32 v{vKFW}, s{sT4}, v{vKFW}")
    a(f"s_lshl_b32 s{sPL}, s{sH}, 16\ns_add_u32 s{sPL}, s{sPL}, s{sT0}\ns_add_u32 s{sPL}, s{sPL}, {W_KVP}")
    a(f"v_lshlrev_b32 v{vT2}, 2, v{vT2}\nv_sub_u32 v{vT}, v{vT}, v{vT2}")
    a(f"v_bfe_u32 v{vT2}, v{vT}, 1, 1\nv_bfe_u32 v1, v{vT}, 3, 1\nv_lshl_or_b32 v{vT2}, v1, 1, v{vT2}\nv_and_or_b32 v{vT2}, v{vT}, 4, v{vT2}")
    a(f"v_and_b32 v{vT}, 1, v{vT}\nv_lshlrev_b32 v{vT}, 4, v{vT}\nv_mov_b32 v1, 0x3f80\nv_lshlrev_b32 v{vT}, v{vT}, v1")
    for k in range(4): a(f"v_cmp_eq_u32 vcc, {k}, v{vT2}\nv_cndmask_b32 v{ASEL+k}, 0, v{vT}, vcc")
    def kazero():
        for k in range(8): a(f"v_mov_b32 v{KAS[k>>2]+(k&3)}, 0")
    kazero()
    lwait(a, C_G, vSM, vT)
    for _ in range(OPT.get('w1', 4)): wsx.pop(0)()
    vm.wait("wq"); signal(a, C_WQ, vSM, vOne)
    stamp(a, 'A', 'wq landed')
    while xs: xs.pop(0)()
    for _ in range(len(wsx) - OPT.get('wl', 0)): wsx.pop(0)()
    vm.wait("xp"); signal(a, C_XP, vSM, vOne)
    stamp(a, 'A', 'wo issued')
    A1PRE = OPT.get('a1pre', 0)
    NR = 3
    A1N = OPT.get('a1n', 28)
    def a1_loop(i0_, i1_):
        for i in range(i0_, min(i0_ + NR, i1_)):
            a(f"ds_read_b128 v[{XR+4*(i%NR)}:{XR+4*(i%NR)+3}], v{aXP+(i&7)} offset:{(i>>3)*4096}")
        for i in range(i0_, i1_):
            a(f"s_waitcnt lgkmcnt({min(NR-1, i1_-1-i)})")
            mfma32(a, ACC, XR+4*(i % NR), FG+4*i, ACC if i else None)
            if i + NR < i1_:
                n = i + NR
                a(f"ds_read_b128 v[{XR+4*(n%NR)}:{XR+4*(n%NR)+3}], v{aXP+(n&7)} offset:{(n>>3)*4096}")
    if A1PRE:
        lwait(a, C_XP, vSM, vT); a1_loop(0, A1PRE)
    lwait(a, C_QH, vSM, vT)
    def p_issue(p):
        a(f"s_add_u32 s{sT4}, s{sPL}, {8192*p}")
        for dt in range(2):
            r = PRL[p] + 4*dt
            a(f"buffer_load_dwordx4 v[{r}:{r+3}], v{vPL}, {srd(S_WS)}, s{sT4} offen offset:{256*dt} sc1")
    G1 = Gather(a, 8, 2, lambda p: PRL[p], p_issue, lambda p: [mfma16(a, KAS[dt], ASEL, PRL[p]+4*dt, KAS[dt]) for dt in range(2)], None, None, None, vNon, vCK, vTag, sLO_, sMS, sGO, 22)
    G1.first_ask()
    stamp(a, 'A', 'partials asked')
    nlate = len(wsx) if OPT.get('wb', 1) else 0
    for _ in range(nlate): wsx.pop(0)()
    G1.extra = nlate
    stamp(a, 'A', 'wo rest issued')
    lwait(a, C_XP, vSM, vT)
    a1_loop(A1PRE, A1N)
    stamp(a, 'A', 'A1 part')
    a("s_setprio 3")
    G1.finish(fast=lambda: (a("s_nop 7"), kazero()))
    a("s_nop 7")
    a(f"v_cvt_pk_bf16_f32 v80, v{KAS[0]}, v{KAS[0]+1}\nv_cvt_pk_bf16_f32 v81, v{KAS[0]+2}, v{KAS[0]+3}\nv_cvt_pk_bf16_f32 v82, v{KAS[1]}, v{KAS[1]+1}\nv_cvt_pk_bf16_f32 v83, v{KAS[1]+2}, v{KAS[1]+3}")
    a(f"ds_write_b64 v{vKFW}, v[80:81]\nds_write_b64 v{vKFW}, v[82:83] offset:256")
    a("s_waitcnt lgkmcnt(0)"); signal(a, C_B2, vSM, vOne)
    a("s_setprio 0")
    vm.q = ["wo"]*nlate
    if not wsx and not nlate: signal(a, C_WO, vSM, vOne)
    stamp(a, 'A', 'kv ready')
    load_m1("m1")
    if nlate and OPT.get('wsig', 0) == 0:
        vm.wait("wo"); signal(a, C_WO, vSM, vOne); stamp(a, 'A', 'wo landed')
    if wsx:
        while wsx: wsx.pop(0)()
    a1_loop(A1N, 28)
    signal(a, C_A1D, vSM, vOne)
    if "wo" in vm.q:
        vm.wait("wo"); signal(a, C_WO, vSM, vOne)
    vm.wait("m1")
    stage1()
    stamp(a, 'A', 'U stored')
    fs_gen()
    def u_phase():
        sUL = 62
        a(f"s_lshl_b32 s{sUL}, s{sCL}, 2\ns_add_u32 s{sUL}, s{sUL}, s{sQ2}\ns_lshl_b32 s{sUL}, s{sUL}, 2\ns_add_u32 s{sUL}, s{sUL}, s{sWV}\ns_lshl_b32 s{sUL}, s{sUL}, 13\ns_add_u32 s{sUL}, s{sUL}, {W_U}\ns_add_u32 s{sUL+1}, s{sUL}, 4096")
        a(f"s_lshl_b32 s{sT1}, s{sWV}, 13\ns_add_u32 s{sT1}, s{sT1}, {UT}\nv_add_u32 v62, s{sT1}, v{vL16}")
        a(f"v_lshrrev_b32 v1, 4, v0\nv_bfe_u32 v{vT}, v0, 2, 2\nv_lshl_add_u32 v{vT2}, v1, 3, v{vT}\nv_lshlrev_b32 v{aU}, 7, v{vT2}")
        a(f"v_and_b32 v1, 1, v1\nv_lshlrev_b32 v1, 1, v1\nv_lshrrev_b32 v{vT}, 1, v{vT}\nv_or_b32 v1, v1, v{vT}\nv_xor_b32 v1, s{sWV}, v1\nv_lshl_add_u32 v{aU}, v1, 5, v{aU}")
        a(f"v_and_b32 v1, 3, v0\nv_lshl_add_u32 v{aU}, v1, 3, v{aU}\nv_add_u32 v{aU}, {UT}, v{aU}")
        a(f"v_bfe_u32 v{vT}, v0, 4, 1\nv_lshlrev_b32 v{vT}, 1, v{vT}\nv_and_b32 v1, 3, v0\nv_xor_b32 v1, v1, v{vT}\nv_lshlrev_b32 v1, 3, v1\nv_lshrrev_b32 v1, v1, v{vNon}\ns_mov_b32 s{sT5}, 0x00010001")
        for k in range(4):
            a(f"v_bfe_u32 v{vT}, v1, {2*k}, 2\nv_mul_u32_u24 v{vT}, 0x8001, v{vT}\nv_and_b32 v{104+k}, s{sT5}, v{vT}")
        lwait(a, C_A1E, vSM, vT)
        lwait(a, C_O if OPT.get('uwait', 1) == 1 else C_B3, vSM, vT)
        if OPT.get('us', 6): a(f"s_sleep {OPT.get('us', 6)}")
        lu = L("ul")
        a(f"{lu}:")
        for k in range(8):
            a(f"buffer_load_dwordx4 v[{UL+4*k}:{UL+4*k+3}], v{vL16}, {srd(S_WS)}, s{sUL if k < 4 else sUL+1} offen offset:{1024*(k&3)} sc1")
        stamp(a, 'A', 'U asked')
        for k in range(8):
            r = UL + 4*k
            a(f"s_waitcnt vmcnt({7-k})")
            for j in range(4): a(f"v_xor_b32 v{r+j}, v{r+j}, v{104+j}")
            a(f"ds_write_b128 v62, v[{r}:{r+3}] offset:{1024*k}")
            a(f"v_or3_b32 v{vT}, v{r}, v{r+1}, v{r+2}")
            a(f"v_or_b32 v{vCK}, v{vT}, v{r+3}" if k == 0 else f"v_or3_b32 v{vCK}, v{vCK}, v{vT}, v{r+3}")
        a(f"v_and_b32 v{vCK}, s{sT5}, v{vCK}\nv_cmp_ne_u32 vcc, 0, v{vCK}\ns_cbranch_vccz {lu}x")
        if OPT['stamps']: a(f"v_writelane_b32 v{STV}, s{sBUD}, 23")
        a(f"{lu}r:\ns_mov_b32 s{sMS}, 0\ns_waitcnt lgkmcnt(0)")
        for k in range(8):
            r = UL + 4*k
            a(f"v_or3_b32 v{vCK}, v{r}, v{r+1}, v{r+2}\nv_or_b32 v{vCK}, v{vCK}, v{r+3}")
            a(f"v_and_b32 v{vCK}, s{sT5}, v{vCK}\nv_cmp_ne_u32 vcc, 0, v{vCK}\ns_cbranch_vccz {lu}k{k}")
            a(f"buffer_load_dwordx4 v[{r}:{r+3}], v{vL16}, {srd(S_WS)}, s{sUL if k < 4 else sUL+1} offen offset:{1024*(k&3)} sc1\ns_bitset1_b32 s{sMS}, {k}\n{lu}k{k}:")
        a(f"s_cmp_eq_u32 s{sMS}, 0\ns_cbranch_scc1 {lu}w\ns_waitcnt vmcnt(0)")
        for k in range(8):
            r = UL + 4*k
            a(f"s_bitcmp1_b32 s{sMS}, {k}\ns_cbranch_scc0 {lu}m{k}")
            for j in range(4): a(f"v_xor_b32 v{r+j}, v{r+j}, v{104+j}")
            a(f"{lu}m{k}:")
        a(f"s_sleep {OPT.get('slp', 8)}\ns_sub_u32 s{sBUD}, s{sBUD}, 8\ns_cbranch_scc0 {lu}r\ns_branch LEND\n{lu}w:")
        for k in range(8): a(f"ds_write_b128 v62, v[{UL+4*k}:{UL+4*k+3}] offset:{1024*k}")
        a(f"{lu}x:")
        a("s_waitcnt lgkmcnt(0)"); signal(a, C_U, vSM, vOne)
    UL = 192; aU = 63
    vYW, vYR, vD, vM, vE0 = 48, 52, 53, 54, 55
    def y_addr():
        a(f"v_and_b32 v1, 15, v0\nv_lshlrev_b32 v{vYW}, 8, v1\nv_and_b32 v1, 7, v1\nv_lshrrev_b32 v{vT}, 5, v0\ns_lshl_b32 s{sT0}, s{sWV}, 1\nv_add_u32 v{vT}, s{sT0}, v{vT}\nv_xor_b32 v{vT}, v{vT}, v1")
        a(f"v_lshl_add_u32 v{vYW}, v{vT}, 4, v{vYW}\nv_bfe_u32 v{vT}, v0, 4, 1\nv_lshl_add_u32 v{vYW}, v{vT}, 3, v{vYW}\nv_add_u32 v{vYW}, {YST}, v{vYW}\nv_xor_b32 v{vYW+1}, {128 + 7*16 + 8}, v{vYW}")
        a(f"v_lshrrev_b32 v1, 3, v0\nv_and_b32 v{vT}, 7, v0\nv_xor_b32 v{vT2}, v{vT}, v1\nv_lshlrev_b32 v{vYR}, 8, v1\nv_lshl_add_u32 v{vYR}, v{vT2}, 4, v{vYR}\ns_lshl_b32 s{sT0}, s{sWV}, 11\ns_add_u32 s{sT0}, s{sT0}, {YST}\nv_add_u32 v{vYR}, s{sT0}, v{vYR}")
        a(f"v_readfirstlane_b32 s{sT0}, v{vTT}\ns_and_b32 s{sT4}, s{sWV}, 1\ns_lshl_b32 s{sT4}, s{sT4}, 8\ns_add_u32 s{sT0}, s{sT0}, s{sT4}\nv_lshl_add_u32 v1, v1, 5, s{sT0}")
        a(f"v_sub_u32 v{vT2}, 2048, v1\ns_cmp_ge_u32 s{sWV}, 2\ns_cselect_b64 vcc, -1, 0\nv_cndmask_b32 v1, v1, v{vT2}, vcc\nv_mul_u32_u24 v1, 1792, v1")
        a(f"v_lshl_add_u32 v1, v{vT}, 4, v1\ns_lshl_b32 s{sT0}, s{sQ2}, 7\nv_add_u32 v{vD}, s{sT0}, v1\ns_sub_u32 s{sT0}, 770, s{sT0}\nv_add_u32 v{vM}, s{sT0}, v1")
    y_addr()
    u_phase()
    stamp(a, 'A', 'U here')
    lwait(a, C_WOR, vSM, vT)
    lwait(a, C_U, vSM, vT)
    AF = 168
    for bc in range(4):
        for ks in range(2):
            for sec in range(2):
                r = AF + 8*bc + 4*ks + 2*sec
                a(f"ds_read_b64_tr_b16 v[{r}:{r+1}], v{aU} offset:{bc*8192+ks*4096+sec*512}")
    PA, QA, ZA = 64, 68, 72
    lg = L("cls")
    a(f"s_cmp_lg_u32 s{sCL}, 0\ns_cbranch_scc1 {lg}g")
    a(f"s_waitcnt lgkmcnt(0)\ns_cmp_lt_u32 s{sTQ}, 2\ns_cbranch_scc1 {lg}h")
    mfma16(a, PA, AF, FR); mfma16(a, QA, AF+16, FI); mfma16(a, PA, AF+4, FR+4, PA); mfma16(a, QA, AF+20, FI+4, QA)
    a(f"s_branch {lg}x\n{lg}h:")
    mfma16(a, PA, AF+8, FR); mfma16(a, QA, AF+24, FI); mfma16(a, PA, AF+12, FR+4, PA); mfma16(a, QA, AF+28, FI+4, QA)
    a(f"s_branch {lg}x\n{lg}g:")
    a("s_waitcnt lgkmcnt(12)"); mfma16(a, PA, AF, FR); mfma16(a, PA, AF+4, FR+4, PA)
    a("s_waitcnt lgkmcnt(8)"); mfma16(a, PA, AF+8, NFI, PA); mfma16(a, PA, AF+12, NFI+4, PA)
    a("s_waitcnt lgkmcnt(4)"); mfma16(a, QA, AF+16, FI); mfma16(a, QA, AF+20, FI+4, QA)
    a("s_waitcnt lgkmcnt(0)"); mfma16(a, QA, AF+24, FR, QA); mfma16(a, QA, AF+28, FR+4, QA)
    a(f"{lg}x:\ns_nop 7")
    MM, PP = 76, 80
    for r in range(4): a(f"v_sub_f32 v{MM+r}, v{PA+r}, v{QA+r}\nv_add_f32 v{PP+r}, v{PA+r}, v{QA+r}")
    a(f"v_cvt_pk_bf16_f32 v84, v{MM}, v{MM+1}\nv_cvt_pk_bf16_f32 v85, v{MM+2}, v{MM+3}\nv_cvt_pk_bf16_f32 v86, v{PP}, v{PP+1}\nv_cvt_pk_bf16_f32 v87, v{PP+2}, v{PP+3}")
    a(f"v_cvt_pk_bf16_f32 v88, v{MM+3}, v{MM+2}\nv_cvt_pk_bf16_f32 v89, v{MM+1}, v{MM}\nv_cvt_pk_bf16_f32 v90, v{PP+3}, v{PP+2}\nv_cvt_pk_bf16_f32 v91, v{PP+1}, v{PP}")
    a(f"ds_write_b64 v{vYW}, v[84:85]\nds_write_b64 v{vYW}, v[86:87] offset:4096\nds_write_b64 v{vYW+1}, v[90:91]\nds_write_b64 v{vYW+1}, v[88:89] offset:4096")
    a("s_waitcnt lgkmcnt(0)"); signal(a, C_Y, vSM, vOne)
    lz = L("z")
    a(f"s_or_b32 s{sT0}, s{sCL}, s{sTQ}\ns_cmp_lg_u32 s{sT0}, 0\ns_cbranch_scc1 {lz}")
    for j in range(4): a(f"v_mov_b32 v{NFI+j}, 0x3f803f80")
    mfma16(a, ZA, AF, NFI); mfma16(a, ZA, AF+4, NFI, ZA)
    a(f"s_lshl_b32 s{sT1}, s{sQ2}, 6\ns_lshl_b32 s{sT2}, s{sWV}, 4\ns_add_u32 s{sT1}, s{sT1}, s{sT2}\nv_lshrrev_b32 v1, 4, v0\nv_lshl_add_u32 v{vE0}, v1, 2, s{sT1}")
    a(f"s_mov_b32 s14, 0x00010001\ns_mov_b32 s15, 0x00010001\ns_movk_i32 s{sT1}, 220\ns_movk_i32 s{sT2}, 224")
    a(f"v_cmp_ge_u32 s[8:9], s{sT1}, v{vE0}\nv_cmp_lt_u32 vcc, 0, v{vE0}\ns_and_b64 s[8:9], s[8:9], s[14:15]\ns_and_b64 s[10:11], s[8:9], vcc\nv_cmp_eq_u32 s[12:13], s{sT2}, v{vE0}\ns_and_b64 s[12:13], s[12:13], s[14:15]")
    a(f"v_lshlrev_b32 v56, 1, v{vE0}\nv_sub_u32 v57, {2*445}, v56")
    a(f"v_cvt_pk_bf16_f32 v92, v{ZA}, v{ZA+1}\nv_cvt_pk_bf16_f32 v93, v{ZA+2}, v{ZA+3}\nv_cvt_pk_bf16_f32 v94, v{ZA+3}, v{ZA}\nv_cvt_pk_bf16_f32 v95, v{ZA+2}, v{ZA+1}")
    a(f"s_mov_b64 exec, s[8:9]\nbuffer_store_dwordx2 v[92:93], v56, {srd(S_OUT)}, 0 offen\nbuffer_store_short v94, v57, {srd(S_OUT)}, 0 offen\nbuffer_store_dword v95, v57, {srd(S_OUT)}, 0 offen offset:2")
    a(f"s_mov_b64 exec, s[10:11]\nbuffer_store_short_d16_hi v94, v57, {srd(S_OUT)}, 0 offen offset:6")
    a(f"s_mov_b64 exec, s[12:13]\nbuffer_store_short v92, v56, {srd(S_OUT)}, 0 offen\ns_mov_b64 exec, -1")
    a(f"{lz}:")
    lwait(a, C_Y, vSM, vT)
    a(f"ds_read_b128 v[84:87], v{vYR}\nds_read_b128 v[88:91], v{vYR} offset:128")
    ly = L("y")
    a(f"s_cmp_eq_u32 s{sQ2}, 3\ns_cbranch_scc1 {ly}3\ns_waitcnt lgkmcnt(1)\nbuffer_store_dwordx4 v[84:87], v{vD}, {srd(S_OUT)}, 0 offen")
    a(f"s_waitcnt lgkmcnt(0)\ns_cmp_eq_u32 s{sQ2}, 0\ns_cbranch_scc1 {ly}0\nbuffer_store_dwordx4 v[88:91], v{vM}, {srd(S_OUT)}, 0 offen\ns_branch {ly}x")
    a(f"{ly}0:\ns_mov_b32 exec_lo, 0x7f7f7f7f\ns_mov_b32 exec_hi, 0x7f7f7f7f\nbuffer_store_dwordx4 v[88:91], v{vM}, {srd(S_OUT)}, 0 offen")
    a(f"s_mov_b32 exec_lo, 0x80808080\ns_mov_b32 exec_hi, 0x80808080\nbuffer_store_dwordx3 v[88:90], v{vM}, {srd(S_OUT)}, 0 offen\nbuffer_store_short v91, v{vM}, {srd(S_OUT)}, 0 offen offset:12\ns_branch {ly}x")
    a(f"{ly}3:\ns_waitcnt lgkmcnt(0)\ns_mov_b32 exec_lo, 0x0f0f0f0f\ns_mov_b32 exec_hi, 0x0f0f0f0f\nbuffer_store_dwordx4 v[84:87], v{vD}, {srd(S_OUT)}, 0 offen")
    a(f"s_mov_b32 exec_lo, 0x10101010\ns_mov_b32 exec_hi, 0x10101010\nbuffer_store_short v84, v{vD}, {srd(S_OUT)}, 0 offen")
    a(f"s_mov_b32 exec_lo, 0xf0f0f0f0\ns_mov_b32 exec_hi, 0xf0f0f0f0\nbuffer_store_dwordx4 v[88:91], v{vM}, {srd(S_OUT)}, 0 offen")
    a(f"{ly}x:\ns_mov_b64 exec, -1")
    stamp(a, 'A', 'A2 done')
    stamps_out(a, 'A')
    a("s_endpgm")

def softmax(a, P, E, T, PHp, PHm):
    idx = [0,1,2,3,4,5,6,8,9,10,11,12,13,14]
    prs = [0,2,4,8,10,12]
    if OPT['mimic']:
        for k in range(7): a(f"v_cvt_pk_bf16_f32 v{E+k}, v{P+idx[2*k]}, v{P+idx[2*k+1]}")
        for k in range(7): a(f"v_lshlrev_b32 v{P+idx[2*k]}, 16, v{E+k}\nv_and_b32 v{P+idx[2*k+1]}, s{sMASK}, v{E+k}")
    mx, mn, t1, t2 = T, T+2, T+1, T+3
    a(f"v_max3_f32 v{mx}, v{P+idx[0]}, v{P+idx[1]}, v{P+idx[2]}\nv_min3_f32 v{mn}, v{P+idx[0]}, v{P+idx[1]}, v{P+idx[2]}")
    for k in range(3, 13, 2):
        a(f"v_max3_f32 v{mx}, v{mx}, v{P+idx[k]}, v{P+idx[k+1]}\nv_min3_f32 v{mn}, v{mn}, v{P+idx[k]}, v{P+idx[k+1]}")
    a(f"v_max_f32 v{mx}, v{mx}, v{P+idx[13]}\nv_min_f32 v{mn}, v{mn}, v{P+idx[13]}")
    a(f"v_mov_b32 v{t1}, v{mx}\nv_mov_b32 v{t2}, v{mn}")
    a(f"v_permlane32_swap_b32 v{mx}, v{t1}\nv_permlane32_swap_b32 v{mn}, v{t2}")
    a(f"v_max_f32 v{mx}, v{mx}, v{t1}\nv_min_f32 v{mn}, v{mn}, v{t2}")
    a(f"v_mul_f32 v{mx}, s{sNL}, v{mx}\nv_mul_f32 v{mn}, s{sL}, v{mn}")
    for i in prs:
        a(f"v_pk_fma_f32 v[{E+i}:{E+i+1}], v[{P+i}:{P+i+1}], s[{sL}:{sL+1}], v[{mx}:{mx+1}] op_sel_hi:[1,0,0]")
        a(f"v_pk_fma_f32 v[{P+i}:{P+i+1}], v[{P+i}:{P+i+1}], s[{sL}:{sL+1}], v[{mn}:{mn+1}] op_sel:[0,1,0] op_sel_hi:[1,1,0]")
    for i in (6, 14): a(f"v_fma_f32 v{E+i}, v{P+i}, s{sL}, v{mx}\nv_fma_f32 v{P+i}, v{P+i}, s{sNL}, v{mn}")
    for i in idx: a(f"v_exp_f32 v{E+i}, v{E+i}\nv_exp_f32 v{P+i}, v{P+i}")
    sp, sm = T+4, T+6
    a(f"v_pk_add_f32 v[{sp}:{sp+1}], v[{E}:{E+1}], v[{E+2}:{E+3}]\nv_pk_add_f32 v[{sm}:{sm+1}], v[{P}:{P+1}], v[{P+2}:{P+3}]")
    for i in prs[2:]: a(f"v_pk_add_f32 v[{sp}:{sp+1}], v[{sp}:{sp+1}], v[{E+i}:{E+i+1}]\nv_pk_add_f32 v[{sm}:{sm+1}], v[{sm}:{sm+1}], v[{P+i}:{P+i+1}]")
    a(f"v_add_f32 v{sp}, v{sp}, v{E+6}\nv_add_f32 v{sm}, v{sm}, v{P+6}\nv_add_f32 v{sp+1}, v{sp+1}, v{E+14}\nv_add_f32 v{sm+1}, v{sm+1}, v{P+14}")
    a(f"v_add_f32 v{sp}, v{sp}, v{sp+1}\nv_add_f32 v{sm}, v{sm}, v{sm+1}")
    a(f"v_mov_b32 v{t1}, v{sp}\nv_mov_b32 v{t2}, v{sm}")
    a(f"v_permlane32_swap_b32 v{sp}, v{t1}\nv_permlane32_swap_b32 v{sm}, v{t2}")
    a(f"v_add_f32 v{sp}, v{sp}, v{t1}\nv_add_f32 v{sm}, v{sm}, v{t2}")
    a(f"v_rcp_f32 v{sp}, v{sp}\nv_rcp_f32 v{sm}, v{sm}")
    for i in prs:
        a(f"v_pk_mul_f32 v[{E+i}:{E+i+1}], v[{E+i}:{E+i+1}], v[{sp}:{sp+1}] op_sel_hi:[1,0]")
        a(f"v_pk_mul_f32 v[{P+i}:{P+i+1}], v[{P+i}:{P+i+1}], v[{sm}:{sm+1}] op_sel_hi:[1,0]")
    for i in (6, 14): a(f"v_mul_f32 v{E+i}, v{E+i}, v{sp}\nv_mul_f32 v{P+i}, v{P+i}, v{sm}")
    for k in range(8):
        hi_e = f"v{E+2*k+1}" if (2*k+1) not in (7, 15) else "0"
        hi_p = f"v{P+2*k+1}" if (2*k+1) not in (7, 15) else "0"
        a(f"v_cvt_pk_bf16_f32 v{PHp+k}, v{E+2*k}, {hi_e}\nv_cvt_pk_bf16_f32 v{PHm+k}, v{P+2*k}, {hi_p}")

sPS, sPL, sOS, sOL, sOUT, sMS, sCG, sGO, sH1S, sH1, sH2S, sH2 = 92, 93, 94, 95, 96, 97, 3, 98, 99, 100, 101, 60
def SCALARS(a):
    a(f"s_lshl_b32 s{sPS}, s{sH}, 4\ns_add_u32 s{sPS}, s{sPS}, s{sRB}\ns_lshl_b32 s{sPS}, s{sPS}, 2\ns_add_u32 s{sPS}, s{sPS}, s{sWV}\ns_lshl_b32 s{sPS}, s{sPS}, 10\ns_add_u32 s{sPS}, s{sPS}, {W_KVP}")
    a(f"s_lshl_b32 s{sOS}, s{sRB}, 2\ns_add_u32 s{sOS}, s{sOS}, s{sWV}\ns_lshl_b32 s{sOS}, s{sOS}, 4\ns_add_u32 s{sOS}, s{sOS}, s{sH}")

    a(f"s_lshl_b32 s{sOS}, s{sOS}, 11\ns_add_u32 s{sOS}, s{sOS}, {W_O}")
    a(f"s_lshl_b32 s{sPL}, s{sH}, 16\ns_lshl_b32 s{sT0}, s{sWV}, 10\ns_add_u32 s{sPL}, s{sPL}, s{sT0}\ns_add_u32 s{sPL}, s{sPL}, {W_KVP}")
    a(f"s_lshl_b32 s{sT1}, s{sXCD}, 2\ns_lshr_b32 s{sT0}, s{sI}, 3\ns_add_u32 s{sT1}, s{sT1}, s{sT0}")
    a(f"s_lshl_b32 s{sOL}, s{sT1}, 2\ns_add_u32 s{sOL}, s{sOL}, s{sWV}\ns_lshl_b32 s{sOL}, s{sOL}, 14\ns_add_u32 s{sOL}, s{sOL}, {W_O}")
    a(f"s_lshl_b32 s{sT1}, s{sT1}, 1\ns_lshr_b32 s{sT0}, s{sWV}, 1\ns_add_u32 s{sT1}, s{sT1}, s{sT0}\ns_mul_i32 s{sOUT}, s{sT1}, {32*1792}")
    a(f"s_and_b32 s{sCG}, s{sI}, 7\ns_lshl_b32 s{sT1}, s{sCG}, 1\ns_and_b32 s{sT0}, s{sWV}, 1\ns_add_u32 s{sT1}, s{sT1}, s{sT0}\ns_lshl_b32 s{sT1}, s{sT1}, 6\ns_add_u32 s{sOUT}, s{sOUT}, s{sT1}\ns_add_u32 s{sOUT}, s{sOUT}, 896")

def gen_B(a):
    a("LB:")
    a(f"s_getpc_b64 s[4:5]")
    l = L("pc"); a(f"{l}:")
    a(f"s_sub_u32 s4, s4, {l}-{NAME}_kernel\ns_subb_u32 s5, s5, 0")
    a(f"s_lshl_b32 s{sT0}, s{sWV}, 13\nv_lshl_add_u32 v1, v0, 7, s{sT0}\nv_min_u32 v1, LTAB-{NAME}_kernel+{T_END}-4, v1")
    a(f"global_load_dword v252, v1, s[4:5]")
    a(f"v_lshlrev_b32 v9, 4, v0\ns_and_b32 s{sT0}, s{sWV}, 1\ns_lshl_b32 s{sT0}, s{sT0}, 10\ns_add_u32 m0, s{sT0}, {PHI}\ns_mul_i32 s{sT1}, s{sH}, 1568\ns_add_u32 s{sT1}, s{sT1}, s{sT0}")
    a("s_waitcnt lgkmcnt(0)")
    mk_srd(a, S_PHI, 22, 16*1568)
    a(f"buffer_load_dwordx4 v9, {srd(S_PHI)}, s{sT1} offen lds")
    if OPT.get('tlb', 0):
        a(f"s_cmp_eq_u32 s{sWV}, 1\ns_cselect_b32 s4, s26, s30\ns_cselect_b32 s5, s27, s31\ns_cmp_eq_u32 s{sWV}, 2\ns_cselect_b32 s4, s8, s4\ns_cselect_b32 s5, s9, s5\ns_cmp_eq_u32 s{sWV}, 3\ns_cselect_b32 s4, s24, s4\ns_cselect_b32 s5, s25, s5")
        a(f"s_lshr_b32 s{sT0}, 3, s{sWV}\nv_min_u32 v1, s{sT0}, v0\nv_mul_u32_u24 v1, 0x200c00, v1\nv_and_b32 v1, 0xfffff000, v1\nv_add_u32 v1, 0x800, v1")
        a(f"global_load_dword v111, v1, s[4:5]")
    if OPT['stamps']:
        a(f"v_mov_b32 v{STV}, 0\nv_writelane_b32 v{STV}, s{ST0+2}, 0"); nst['B'] = 1
    vL16, vSM, vOne, vT, vT2, vNon = 9, 10, 11, 12, 13, 14
    aX0, aW0 = 2, 6
    AK, AV, WF, PHIF, X = 16, 32, 48, 80, 128
    ASEL, WOR, DM = 96, 100, 104
    vTag, vZ, vAcc = 107, 108, 109
    a(f"v_mov_b32 v{vZ}, 0")
    a(f"s_mov_b32 s{sL}, 0x3fb8aa3b\ns_mov_b32 s{sNL}, 0xbfb8aa3b\ns_mov_b32 s{sMASK}, 0xffff0000\ns_mov_b32 s{sLO}, 0xffff")
    vR, vHH = 7, 8
    a(f"v_and_b32 v{vR}, 31, v0\nv_lshrrev_b32 v{vHH}, 5, v0\nv_bfe_u32 v{vT}, v0, 1, 3")
    a(f"s_lshl_b32 s{sT0}, s{sWV}, 12\ns_add_u32 s{sT0}, s{sT0}, {XR0}")
    a(f"v_xor_b32 v{vT2}, v{vT}, v{vHH}\nv_lshlrev_b32 v{vT2}, 4, v{vT2}\nv_lshl_add_u32 v{vT2}, v{vR}, 7, v{vT2}\nv_add_u32 v{vT2}, s{sT0}, v{vT2}")
    for ks in range(4): a(f"v_xor_b32 v{aX0+ks}, {32*ks}, v{vT2}")
    aKW, aKA, aKB = 112, 116, 118
    a(f"s_lshl_b32 s{sT0}, s{sWV}, 12\ns_add_u32 s{sT0}, s{sT0}, {KVX}")
    a(f"v_xor_b32 v{vT2}, v{vT}, v{vHH}\nv_lshlrev_b32 v{vT2}, 3, v{vT2}\nv_lshl_add_u32 v{vT2}, v{vR}, 6, v{vT2}\nv_add_u32 v{vT2}, s{sT0}, v{vT2}")
    for k in range(4): a(f"v_xor_b32 v{aKW+k}, {16*k}, v{vT2}")
    vG, vR4, vCC = 122, 123, 124
    a(f"v_lshrrev_b32 v{vG}, 4, v0\nv_bfe_u32 v{vR4}, v0, 2, 2\nv_and_b32 v{vCC}, 3, v0")
    a(f"v_lshl_add_u32 v{vT2}, v{vHH}, 3, v{vR4}\nv_lshlrev_b32 v{vT2}, 6, v{vT2}\nv_lshl_add_u32 v{vT2}, v{vCC}, 3, v{vT2}\nv_and_b32 v{vT}, 1, v{vG}\nv_lshl_add_u32 v{aW0}, v{vT}, 5, v{vT2}")
    a(f"v_lshlrev_b32 v{vT}, 2, v{vT}\nv_lshrrev_b32 v{vT2}, 1, v{vR4}\nv_add_u32 v{vT}, v{vT}, v{vT2}\nv_xor_b32 v{vT}, v{vT}, v{vCC}\nv_lshlrev_b32 v{vT}, 3, v{vT}")
    a(f"v_lshl_add_u32 v{vT2}, v{vG}, 3, v{vR4}\nv_lshl_add_u32 v{vT}, v{vT2}, 6, v{vT}")
    a(f"v_add_u32 v{aKB}, {KVX+16384}, v{vT}\nv_add_u32 v{aKB+1}, 256, v{aKB}\nv_xor_b32 v{aKB+1}, 16, v{aKB+1}\nv_xor_b32 v{aKB+2}, 32, v{aKB}\nv_xor_b32 v{aKB+3}, 32, v{aKB+1}")
    a(f"s_and_b32 s{sT0}, s{sWV}, 1\ns_lshl_b32 s{sT0}, s{sT0}, 5\ns_lshr_b32 s{sT1}, s{sWV}, 1\ns_lshl_b32 s{sT1}, s{sT1}, 11\ns_sub_u32 s{sT1}, 16384, s{sT1}")
    for sec in range(2): a(f"v_xor_b32 v{aKA+sec}, s{sT0}, v{aKB+sec}\nv_subrev_u32 v{aKA+sec}, s{sT1}, v{aKA+sec}")
    vPS, vPL, vKFW, vKFR = 125, 126, 127, 105
    a(f"v_and_b32 v{vT}, 15, v0\nv_lshlrev_b32 v{vT}, 4, v{vT}\nv_and_b32 v{vT2}, 1, v{vG}\nv_lshl_add_u32 v{vT}, v{vT2}, 9, v{vT}")
    a(f"v_lshl_add_u32 v{vPS}, v{vHH}, 8, v{vT}\nv_lshl_add_u32 v{vPL}, v{vHH}, 12, v{vT}\nv_lshl_add_u32 v{vKFW}, v{vHH}, 3, v{vT}")
    a(f"s_lshl_b32 s{sT0}, s{sWV}, 10\ns_add_u32 s{sT0}, s{sT0}, {KVF}\nv_add_u32 v{vKFW}, s{sT0}, v{vKFW}")
    mk_srd(a, S_WS, 30, 0x10000000); mk_srd(a, S_OUT, 26, 2048*1792)
    SCALARS(a)
    def xread(c):
        for ks in range(4):
            a(f"ds_read_b128 v[{X+16*c+4*ks}:{X+16*c+4*ks+3}], v{aX0+ks} offset:{(c % 4)*SLOT}")
    a(f"v_lshrrev_b32 v{vT}, 4, v{vR}\nv_and_b32 v{vT2}, 15, v0\nv_add_u32 v{vT2}, 4, v{vT2}\nv_lshrrev_b32 v{vT2}, 4, v{vT2}\nv_lshl_add_u32 v{vT2}, v{vT}, 1, v{vT2}\nv_sub_u32 v{DM}, v{vR}, v{vT2}")
    a(f"v_and_b32 v{vT2}, 11, v0\nv_add_u32 v{vT}, 28, v{vT}\nv_cmp_eq_u32 vcc, 11, v{vT2}\nv_cndmask_b32 v{DM}, v{DM}, v{vT}, vcc")
    a(f"v_lshl_add_u32 v{WOR}, v{vHH}, 2, v{vR4}\nv_sub_u32 v{vT}, v{WOR}, v{vHH}\nv_add_u32 v{WOR+1}, 8, v{vT}\nv_add_u32 v{WOR+2}, 14, v{WOR}\nv_add_u32 v{WOR+3}, 22, v{vT}\nv_min_u32 v{WOR+3}, 27, v{WOR+3}")
    a(f"v_lshlrev_b32 v{vKFR}, 4, v{DM}\nv_lshl_add_u32 v{vKFR}, v{vHH}, 9, v{vKFR}\nv_add_u32 v{vKFR}, {KVF}, v{vKFR}")
    a(f"v_and_b32 v{vT2}, 1, v{vG}\nv_lshlrev_b32 v{vT2}, 5, v{vT2}\nv_lshl_add_u32 v{vT2}, v{vCC}, 3, v{vT2}")
    a(f"s_and_b32 s{sT0}, s{sWV}, 1\nv_add_u32 v{vT2}, {WOA}, v{vT2}")
    for k in range(4):
        a(f"v_bfe_u32 v{vT}, v{WOR+k}, 1, 1\nv_xor_b32 v{vT}, s{sT0}, v{vT}\nv_lshl_add_u32 v{vT}, v{vT}, 6, v{vT2}\nv_lshl_add_u32 v{WOR+k}, v{WOR+k}, 7, v{vT}")
    aPH = 106
    a(f"v_min_u32 v{vT}, 27, v{DM}\nv_mul_u32_u24 v{vT2}, 224, v{vHH}\nv_lshl_add_u32 v{aPH}, v{vT}, 1, v{vT2}\nv_add_u32 v{aPH}, {PHI}, v{aPH}")
    AT = 88
    a(f"s_waitcnt vmcnt(0)")
    if OPT['prio']: a(f"s_setprio {OPT['prio']}")
    if OPT['lst']: stamp(a, 'B', 'setup')
    lq = []
    def lwait_tag(tag):
        if tag not in lq: return
        idx = max(i for i, t in enumerate(lq) if t == tag)
        a(f"s_waitcnt lgkmcnt({min(15, len(lq)-1-idx)})")
        del lq[:idx+1]
    for c in range(7):
        a("s_barrier")
        for ks in range(4):
            a(f"ds_read_b128 v[{X+16*c+4*ks}:{X+16*c+4*ks+3}], v{aX0+ks} offset:{(c % 4)*SLOT}")
            for sg in range(2):
                for sec in range(2):
                    r = WF + 8*ks + 4*sg + 2*sec
                    a(f"ds_read_b64_tr_b16 v[{r}:{r+1}], v{aW0} offset:{WKV + c*8192 + sg*4096 + ks*1024 + sec*256}")
            lq.extend([f"k{ks}"]*5)
        if c == 6: a(f"ds_read_b32 v{vNon}, v{vSM} offset:{NONCE}"); lq.append("non")
        for ks in range(4):
            n = 4*c + ks
            lwait_tag(f"k{ks}")
            if n == 27: signal(a, C_G, vSM, vOne)
            mfma32(a, AK, WF+8*ks, X+4*n, AK if n else None)
            mfma32(a, AV, WF+8*ks+4, X+4*n, AV if n else None)
        if c == 0:
            for i in range(2):
                for jj in range(8):
                    a(f"ds_read_u16 v{240+8*i+jj}, v{aPH} offset:{(16*i + (jj & 3) + 8*(jj >> 2))*56}")
            a("s_waitcnt lgkmcnt(0)")
            for k in range(8): a(f"v_lshl_or_b32 v{PHIF+k}, v{241+2*k}, 16, v{240+2*k}")
            a(f"s_mov_b32 exec_lo, 0\nv_mov_b32 v{PHIF+6}, 0\nv_mov_b32 v{PHIF+7}, 0\ns_mov_b32 exec_lo, -1")
    a(f"s_waitcnt lgkmcnt(1)\ns_mov_b32 s{sT0}, 0x9e3779b1\nv_mul_lo_u32 v{vT}, v{vNon}, s{sT0}\nv_cmp_lt_u32 vcc, 1, v{vCC}\nv_and_b32 v{vT2}, 1, v0\nv_lshlrev_b32 v{vT2}, 4, v{vT2}\nv_cndmask_b32 v{vT}, v{vNon}, v{vT}, vcc")
    a(f"v_xor_b32 v{vT2}, 16, v{vT2}\nv_lshlrev_b32 v{vT}, v{vT2}, v{vT}\nv_and_b32 v{vTag}, 0xbfff0000, v{vT}")
    stamp(a, 'B', 'gemm')
    if OPT.get('trunc'):
        stamps_out(a, 'B'); return
    KB = 48; VB = 56; E = 64; T = 88
    for j in range(8): a(f"v_cvt_pk_bf16_f32 v{KB+j}, v{AK+2*j}, v{AK+2*j+1}")
    mfma32(a, AK, PHIF, KB, None); mfma32(a, AK, PHIF+4, KB+4, AK)
    for j in range(8): a(f"v_cvt_pk_bf16_f32 v{VB+j}, v{AV+2*j}, v{AV+2*j+1}")
    a(f"s_mov_b32 exec_lo, 0\nv_mov_b32 v{VB+6}, 0x3f80\nv_mov_b32 v{VB+7}, 0\ns_mov_b32 exec_lo, -1")
    for k in range(4): a(f"ds_write_b64 v{aKW+k}, v[{VB+2*k}:{VB+2*k+1}] offset:16384")
    softmax(a, AK, E, T, 32, 40)
    for k in range(4):
        a(f"ds_write_b64 v{aKW+k}, v[{32+2*k}:{33+2*k}]\nds_write_b64 v{aKW+k}, v[{40+2*k}:{41+2*k}] offset:2048")
    a("s_waitcnt lgkmcnt(0)"); signal(a, C_B1, vSM, vOne)
    lwait(a, C_B1, vSM, vT)
    stamp(a, 'B', 'phik sync')
    FA, FB = 32, 48
    for ks in range(4):
        for sec in range(2): a(f"ds_read_b64_tr_b16 v[{FA+4*ks+2*sec}:{FA+4*ks+2*sec+1}], v{aKA+sec} offset:{4096*ks}")
        for dt in range(2):
            for sec in range(2):
                r = FB + 16*dt + 4*ks + 2*sec
                a(f"ds_read_b64_tr_b16 v[{r}:{r+1}], v{aKB+2*dt+sec} offset:{4096*ks}")
        if ks >= 2:
            k2 = ks - 2
            a(f"s_waitcnt lgkmcnt(12)")
            for dt in range(2): mfma16(a, 16+4*dt, FA+4*k2, FB+16*dt+4*k2, 16+4*dt if k2 else None)
    for k2 in (2, 3):
        a(f"s_waitcnt lgkmcnt({6*(3-k2)})")
        for dt in range(2): mfma16(a, 16+4*dt, FA+4*k2, FB+16*dt+4*k2, 16+4*dt)
    a(f"ds_read_b32 v{vT2}, v{vSM} offset:{C_WQ}")
    a(f"v_add_u32 v{AT}, {WQ}, v{aW0}")
    a(f"v_cvt_pk_bf16_f32 v24, v16, v17\nv_cvt_pk_bf16_f32 v25, v18, v19\nv_cvt_pk_bf16_f32 v26, v20, v21\nv_cvt_pk_bf16_f32 v27, v22, v23")
    a("v_permlane32_swap_b32 v24, v26\nv_permlane32_swap_b32 v25, v27")
    a(f"v_bfi_b32 v27, s{sLO}, v27, v{vTag}")
    a(f"buffer_store_dwordx4 v[24:27], v{vPS}, {srd(S_WS)}, s{sPS} offen sc1")
    stamp(a, 'B', 'partial out')
    lq = L("wq")
    a(f"s_waitcnt lgkmcnt(0)\nv_readfirstlane_b32 s{sT0}, v{vT2}\ns_cmp_ge_u32 s{sT0}, 4\ns_cbranch_scc1 {lq}")
    lwait(a, C_WQ, vSM, vT2)
    a(f"{lq}:")
    AQ = 32
    NB = 6
    def wq_read(n):
        r = WF + 4*(n % 8)
        for sec in range(2): a(f"ds_read_b64_tr_b16 v[{r+2*sec}:{r+2*sec+1}], v{AT} offset:{n*1024+sec*256}")
    vH, vHA = 110, 111
    for n in range(NB): wq_read(n)
    for n in range(28):
        a(f"s_waitcnt lgkmcnt({2*min(NB-1, 27-n)})")
        mfma32(a, AQ, WF+4*(n % 8), X+4*n, AQ if n else None)
        if n + NB < 28: wq_read(n + NB)
        if n == OPT.get('qh', 27): signal(a, C_QH, vSM, vOne)
    PHQp = 112; PHQm = 80
    for j in range(8): a(f"v_cvt_pk_bf16_f32 v{KB+j}, v{AQ+2*j}, v{AQ+2*j+1}")
    mfma32(a, AK, PHIF, KB, None); mfma32(a, AK, PHIF+4, KB+4, AK)
    stamp(a, 'B', 'q gemm')
    softmax(a, AK, E, T, PHQp, PHQm)
    stamp(a, 'B', 'phiq')
    lwait(a, C_B2, vSM, vT)
    stamp(a, 'B', 'kv sync')
    for p in range(4): a(f"ds_read_b128 v[{48+4*p}:{51+4*p}], v{vKFR} offset:{1024*p}")
    N = 16
    for p in range(4):
        a(f"s_waitcnt lgkmcnt({3-p})")
        mfma32(a, N, 48+4*p, (PHQp if p < 2 else PHQm) + 4*(p & 1), N if p else None)
    a(f"ds_read_b32 v{vT2}, v{vSM} offset:{C_WO}")
    a(f"v_add_f32 v{T}, 0x358637bd, v{N+7}\nv_rcp_f32 v{T}, v{T}")
    for i in [0,2,4,8,10,12]: a(f"v_pk_mul_f32 v[{N+i}:{N+i+1}], v[{N+i}:{N+i+1}], v[{T}:{T+1}] op_sel_hi:[1,0]")
    for i in (6, 14): a(f"v_mul_f32 v{N+i}, v{N+i}, v{T}")
    for k in range(8):
        hi = f"v{N+2*k+1}" if (2*k+1) not in (7, 15) else "0"
        a(f"v_cvt_pk_bf16_f32 v{32+k}, v{N+2*k}, {hi}")
        if k in (3, 7):
            a(f"v_or_b32 v{32+k}, v{32+k}, v{vTag}")
            a(f"buffer_store_dwordx4 v[{29+k}:{32+k}], v{vL16}, {srd(S_WS)}, s{sOS} offen offset:{1024*(k>>2)} sc1")
    stamp(a, 'B', 'o out')
    lx = L("idle")
    a(f"s_cmp_lg_u32 s{sCG}, 7\ns_cbranch_scc1 {lx}")
    a(f"s_sleep {OPT.get('be', 24) + 30}")
    signal(a, C_O, vSM, vOne); signal(a, C_WOR, vSM, vOne); signal(a, C_B3, vSM, vOne)
    a(f"s_branch LBX\n{lx}:")
    WOF = 128; OL = 16
    def wo_reads(hs, delta):
        for h2 in hs:
            off = wobase(h2) - delta
            assert 0 <= off < 65536
            for i in range(2):
                for sec in range(2):
                    r = WOF + 8*h2 + 4*i + 2*sec
                    a(f"ds_read_b64_tr_b16 v[{r}:{r+1}], v{WOR+2*i+sec} offset:{off}")
    lq = L("wo")
    a(f"s_waitcnt lgkmcnt(0)\nv_readfirstlane_b32 s{sT0}, v{vT2}\ns_cmp_ge_u32 s{sT0}, 4\ns_cbranch_scc1 {lq}")
    lwait(a, C_WO, vSM, vT)
    a(f"{lq}:")
    G2 = Gather(a, 8, 2, lambda p: OL + 8*p, lambda p: o_issue(p), lambda p: o_consume(p), vH, vHA, None, vNon, vAcc, vTag, sLO, sMS, sGO, 22)
    wo_reads(range(8), WOA)
    for k in range(4): a(f"v_add_u32 v{WOR+k}, {WOB-WOA}, v{WOR+k}")
    wo_reads(range(8, 16), WOB)
    vO, vOW, vOX, vOR, vORX = 88, 89, 90, 91, 92
    a(f"v_mul_u32_u24 v{vO}, 1792, v{vR}\nv_lshl_add_u32 v{vO}, v{vHH}, 4, v{vO}")
    a(f"s_cmp_lt_u32 s{sWV}, 2\ns_cselect_b32 s{sT1}, {OB0}, {OB1}\ns_cselect_b32 s{sT2}, 0, {OB1X - 28*1024 - OB1}")
    a(f"v_add_u32 v{vOR}, s{sT1}, v{vL16}\nv_add_u32 v{vORX}, s{sT2}, v{vOR}")
    a(f"s_and_b32 s{sT0}, s{sWV}, 1\ns_lshl_b32 s{sT1}, s{sT0}, 14\ns_mul_i32 s{sT2}, s{sT2}, s{sT0}\nv_add_u32 v{vOW}, s{sT1}, v{vOR}\nv_add_u32 v{vOX}, s{sT2}, v{vOW}")
    a("s_waitcnt lgkmcnt(0)"); signal(a, C_WOR, vSM, vOne)
    stamp(a, 'B', 'wo frags')
    def o_issue(p):
        if not p & 1: a(f"s_add_u32 s{sT4}, s{sOL}, {2048*p}")
        else: a(f"s_add_u32 s{sT4}, s{sOL}, {2048*(p-1)}")
        for k in range(2):
            r = OL + 8*p + 4*k
            a(f"buffer_load_dwordx4 v[{r}:{r+3}], v{vL16}, {srd(S_WS)}, s{sT4} offen offset:{2048*(p&1)+1024*k} sc1")
    def o_consume(p):
        for k in range(2):
            r = OL + 8*p + 4*k
            a(f"v_and_b32 v{r+3}, s{sLO}, v{r+3}\nds_write_b128 v{vOX if p >= 6 else vOW}, v[{r}:{r+3}] offset:{2048*p+1024*k}")
    def backoff(early, late):
        lb = L("bo")
        a(f"s_lshr_b32 s{sT0}, 0xaa54, s{sH}\ns_bitcmp1_b32 s{sT0}, 0\ns_cbranch_scc1 {lb}")
        if early > late: a(f"s_sleep {early - late}")
        a(f"{lb}:")
        if late: a(f"s_sleep {late}")
    backoff(OPT.get('be1', 8), 0)
    l2 = L("h2")
    a(f"s_bitcmp1_b32 s{sWV}, 0\ns_cbranch_scc1 {l2}o")
    for par in range(2):
        late = [p for p in range(8) if (0xaa54 >> (8*par + p)) & 1 or OPT.get('one', 1)]
        order = [p for p in range(8) if p not in late] + late
        for n_, p in enumerate(order):
            if n_ == 8 - len(late):
                if par == 0: stamp(a, 'B', 'o asked 1')
                backoff(OPT.get('be', 24), OPT.get('bl', 0))
            o_issue(p)
        signal(a, C_O, vSM, vOne)
        if par == 0: stamp(a, 'B', 'o asked 2')
        for n_, p in enumerate(order):
            r = OL + 8*p
            a(f"s_waitcnt vmcnt({2*(7-n_)})")
            if n_ == 0: a(f"v_bitop3_b32 v{vAcc}, v{r+3}, v{r+7}, v{vTag} bitop3:0x7e")
            else: a(f"v_bitop3_b32 v{vAcc}, v{vAcc}, v{r+3}, v{vTag} bitop3:0xf6\nv_bitop3_b32 v{vAcc}, v{vAcc}, v{r+7}, v{vTag} bitop3:0xf6")
            for k in range(2):
                rr = r + 4*k
                a(f"v_xor_b32 v{rr+3}, v{vTag}, v{rr+3}\nds_write_b128 v{vOX if p >= 6 else vOW}, v[{rr}:{rr+3}] offset:{2048*p+1024*k}")
        if par == 0: a(f"s_branch {l2}j\n{l2}o:")
    a(f"{l2}j:\nv_cmp_lt_u32 vcc, s{sLO}, v{vAcc}\ns_cbranch_vccz {l2}x")
    a("s_waitcnt lgkmcnt(0)")
    for q_ in range(16): a(f"v_xor_b32 v{OL+4*q_+3}, v{vTag}, v{OL+4*q_+3}")
    a(f"s_mov_b32 s{sMS}, 0xff\ns_mov_b32 s{sGO}, 0xff")
    G2.take(l2 + "u", False)
    G2.l = l2
    G2.retry()
    a("s_waitcnt lgkmcnt(0)"); signal(a, C_B3, vSM, vOne)
    lwait(a, C_B3, vSM, vT)
    stamp(a, 'B', 'o sync')
    OF = 48; NR = 8
    def o_read(n): a(f"ds_read_b128 v[{OF+4*(n%NR)}:{OF+4*(n%NR)+3}], v{vORX if n >= 28 else vOR} offset:{1024*n}")
    for n in range(NR): o_read(n)
    for n in range(32):
        a(f"s_waitcnt lgkmcnt({min(NR-1, 31-n)})")
        mfma32(a, 16, WOF+4*n, OF+4*(n % NR), 16 if n else None)
        if n + NR < 32: o_read(n + NR)
    for j in range(8): a(f"v_cvt_pk_bf16_f32 v{32+j}, v{16+2*j}, v{17+2*j}")
    a("v_permlane32_swap_b32 v32, v34\nv_permlane32_swap_b32 v33, v35\nv_permlane32_swap_b32 v36, v38\nv_permlane32_swap_b32 v37, v39")
    a(f"buffer_store_dwordx4 v[32:35], v{vO}, {srd(S_OUT)}, s{sOUT} offen")
    a(f"buffer_store_dwordx4 v[36:39], v{vO}, {srd(S_OUT)}, s{sOUT} offen offset:32")
    a("LBX:")
    stamp(a, 'B', 'end')
    stamps_out(a, 'B')

a = Asm()
prologue(a)
gen_A(a)
gen_B(a)
a("LEND:\ns_endpgm")
text = hz.fix(a.text())
tab, tn = tables()
text += "\n.p2align 8\nLTAB:\n" + tab + "\n"
src = make_file([(NAME+"_kernel", 256, 512, LDS_BYTES)], {NAME+"_kernel": (text, 256, 102, 256)}, single=True)
open(sys.argv[1], "w").write(src)
if OPT['stamps']:
    open(sys.argv[1] + ".names", "w").write("\n".join(names['B'] + ['']*(NSTAMP-len(names['B'])) + names['A'] + ['']*(NSTAMP-len(names['A']))))
print("stamps B", nst['B'], "A", nst['A'], "table bytes", tn, "src bytes", len(src))
```

```python
import sys, math, struct
from asmlib import *
import hz

OPT = dict(stamps=0, mimic=1, hpx=4, rot=1, prio=2, clk=0, ahead=3, lst=0, seq=3, wolate=0)
for x in sys.argv[2:]:
    k, v = x.split('='); OPT[k] = int(v) if v.lstrip('-').isdigit() else v

WKV = 0
WQ = 0
XR0 = 57344
SLOT = 16384
KVX = XR0
XP = 122880
STG = XP
UT = XP
SM = 155648
C_B1, C_B2, C_B3, C_WOR, C_WQ, C_WO, C_QG, C_U, C_G, C_A1E, C_P, NONCE, C_XP, C_A1D, C_O, C_Y, C_UA, C_QH, C_PL = [4*i for i in range(19)]
YST = 32768
PHI = SM + 256
KVF = SM + 4096
OB = 0
WOA, WOB = 28672, XR0 + 2*SLOT
def wobase(h): return WOA + 3584*h if h < 8 else WOB + 3584*(h-8)
OB0, OB1, OB1X = XR0, 0, WOB + 28672
LDS_BYTES = 163840
W_KVP = 0x1000; W_O = 0x201000; W_U = 0x402000; W_FL = 0x180000
W_FU = W_FL; W_F1 = W_FL + 0x10000; W_F2 = W_FL + 0x30000
W_ST = 0x700000
W_WP = 0x700000
S_BX, S_W, S_AX, S_WO, S_WS, S_OUT, S_PHI, S_FR, S_FI, S_DBG = [32 + 4*i for i in range(10)]
sXCD, sI, sH, sRB, sWV, sROT, sBUD, sNON = 72, 73, 74, 75, 76, 77, 78, 79
sT0, sT1, sT2, sT3, sT4, sT5 = 80, 81, 82, 83, 84, 85
sL, sNL, sMASK, sLO = 86, 87, 88, 89
sTAB = 6
ST0 = 90
OF_ = OPT.get('of', '')
def srd(s): return f"s[{s}:{s+3}]"

class VM:
    def __init__(self, a): self.a = a; self.q = []
    def issue(self, tag, n=1): self.q += [tag]*n
    def wait(self, tag):
        if tag not in self.q: return
        idx = max(i for i, t in enumerate(self.q) if t == tag)
        n = len(self.q) - 1 - idx
        assert n <= 63
        self.a(f"s_waitcnt vmcnt({n})")
        self.q = self.q[idx+1:]
    def drain(self):
        self.a("s_waitcnt vmcnt(0)"); self.q = []

lab = [0]
def L(p):
    lab[0] += 1
    return f"L{p}_{lab[0]}"

nst = {'B': 0, 'A': 0}
names = {'B': ['start'], 'A': ['start']}
CLK = 's_memtime' if OPT['clk'] else 's_memrealtime'
STV = 15
NSTAMP = 24
def stamp(a, role, name=''):
    if not OPT['stamps']: return
    if OPT['stamps'] == 2 and name not in ('end', 'A2 done', 'o out', 'gemm', 'kv ready', 'U stored'): return
    i = nst[role]; nst[role] += 1; names[role].append(name)
    assert i < NSTAMP
    a(f"{CLK} s[{ST0}:{ST0+1}]\ns_waitcnt lgkmcnt(0)\nv_writelane_b32 v{STV}, s{ST0}, {i}")
def stamps_out(a, role):
    if not OPT['stamps']: return
    lx = L("st")
    a(f"s_cmp_lg_u32 s{sWV}, 0\ns_cbranch_scc1 {lx}")
    if OPT.get('dbgwg') is not None and role == OPT.get('dbgrole', 'B'):
        ly = L("dg")
        a(f"s_cmp_lg_u32 s2, {OPT['dbgwg']}\ns_cbranch_scc1 {ly}")
        a(f"v_mbcnt_lo_u32_b32 v1, -1, 0\nv_mbcnt_hi_u32_b32 v1, -1, v1\nv_lshlrev_b32 v1, 2, v1\nv_readlane_b32 s{sT0}, v{STV}, 0\ns_nop 3\nv_subrev_u32 v2, s{sT0}, v{STV}")
        a(f"s_mov_b64 exec, 0xfffe\nglobal_store_dword v1, v2, s[28:29]\ns_mov_b64 exec, -1\n{ly}:")
    a(f"v_mbcnt_lo_u32_b32 v1, -1, 0\nv_mbcnt_hi_u32_b32 v1, -1, v1\nv_lshlrev_b32 v1, 3, v1")
    a(f"s_mul_i32 s{sT0}, s2, {2*NSTAMP*8}\ns_add_u32 s{sT0}, s{sT0}, {W_ST + (NSTAMP*8 if role == 'A' else 0)}")
    a(f"v_mov_b32 v2, v{STV}\nv_mov_b32 v3, 0")
    a(f"s_mov_b64 exec, 0xffffff")
    a(f"buffer_store_dwordx2 v[2:3], v1, {srd(S_WS)}, s{sT0} offen")
    a(f"{lx}:")

def signal(a, cnt, vSM, vOne):
    a("s_mov_b64 exec, 1")
    a(f"ds_add_u32 v{vSM}, v{vOne} offset:{cnt}")
    a("s_mov_b64 exec, -1")
def lwait(a, cnt, vSM, vT, n=4):
    l = L("w")
    a(f"{l}:")
    a(f"ds_read_b32 v{vT}, v{vSM} offset:{cnt}")
    a(f"s_sub_u32 s{sBUD}, s{sBUD}, 1\ns_cbranch_scc1 LEND")
    a("s_waitcnt lgkmcnt(0)")
    a(f"v_readfirstlane_b32 s{sT0}, v{vT}")
    a(f"s_cmp_ge_u32 s{sT0}, {n}\ns_cbranch_scc0 {l}")
def gpoll(a, vDst, vAddr, sOff, vNon):
    lp = L("gp")
    a(f"{lp}:\nbuffer_load_dword v{vDst}, v{vAddr}, {srd(S_WS)}, s{sOff} offen sc1")
    a(f"s_sub_u32 s{sBUD}, s{sBUD}, 4\ns_cbranch_scc1 LEND")
    a(f"s_waitcnt vmcnt(0)\nv_cmp_ne_u32 vcc, v{vDst}, v{vNon}\ns_cbranch_vccnz {lp}")

def mfma32(a, d, A, B, c=None):
    cs = f"v[{c}:{c+15}]" if c is not None else "0"
    a(f"v_mfma_f32_32x32x16_bf16 v[{d}:{d+15}], v[{A}:{A+3}], v[{B}:{B+3}], {cs}")
def mfma16(a, d, A, B, c=None):
    cs = f"v[{c}:{c+3}]" if c is not None else "0"
    a(f"v_mfma_f32_16x16x32_bf16 v[{d}:{d+3}], v[{A}:{A+3}], v[{B}:{B+3}], {cs}")

def dmap(m):
    if m in (11, 15): return 28
    if m in (27, 31): return 29
    return m - (m > 11) - (m > 15) - (m > 27)

def bf16(x):
    u = struct.unpack('<I', struct.pack('<f', x))[0]
    return ((u + 0x7FFF + ((u >> 16) & 1)) >> 16) & 0xFFFF
def f32(x): return struct.unpack('<I', struct.pack('<f', x))[0]

T_M1 = 0; T_END = T_M1 + 2048
def tables():
    w = []
    for i in range(2):
        for l in range(64):
            j, hh = l & 31, l >> 5
            c, comp = j >> 1, j & 1
            vals = []
            for jj in range(8):
                s1 = 16*i + (jj & 3) + 8*(jj >> 2) + 4*hh
                if comp == 0: v = math.cos(2*math.pi*((c*s1) % 32)/32)
                elif c: v = -math.sin(2*math.pi*((c*s1) % 32)/32)
                else: v = math.cos(math.pi*s1)
                if abs(v) < 1e-9: v = 0.0
                vals.append(bf16(v))
            w += [vals[2*k] | (vals[2*k+1] << 16) for k in range(4)]
    out = []
    for i in range(0, len(w), 8):
        out.append(".long " + ",".join("0x%x" % x for x in w[i:i+8]))
    return "\n".join(out), 4*len(w)

def prologue(a):
    a("s_load_dwordx16 s[8:23], s[0:1], 0")
    a("s_load_dwordx8 s[24:31], s[0:1], 64")
    a("s_cmp_ge_u32 s2, 256\ns_cbranch_scc1 LEND")
    if OPT.get('epf', 0):
        l = L("pc")
        a(f"s_getpc_b64 s[4:5]\n{l}:\nv_lshlrev_b32 v1, 7, v0\nv_min_u32 v1, LTAB-{l}+{T_END}-4, v1\nglobal_load_dword v255, v1, s[4:5]")
    a(f"s_memrealtime s[{ST0}:{ST0+1}]")
    if OPT['stamps']:
        a(f"{CLK} s[{ST0+2}:{ST0+3}]")
    a("v_lshrrev_b32 v1, 6, v0\nv_and_b32 v0, 63, v0")
    a(f"v_mov_b32 v10, {SM}\nv_mov_b32 v11, 0\nv_lshl_add_u32 v2, v0, 2, v10\nds_write_b32 v2, v11\nv_mov_b32 v11, 1")
    a(f"s_and_b32 s{sXCD}, s2, 7\ns_lshr_b32 s{sI}, s2, 3")
    a(f"v_readfirstlane_b32 s{sWV}, v1")
    hpx = OPT['hpx']; lh = hpx.bit_length() - 1; lr_ = 5 - lh
    a(f"s_and_b32 s{sH}, s{sXCD}, {16//hpx - 1}\ns_lshl_b32 s{sH}, s{sH}, {lh}\ns_lshr_b32 s{sT0}, s{sI}, {lr_}\ns_add_u32 s{sH}, s{sH}, s{sT0}")
    a(f"s_lshr_b32 s{sRB}, s{sXCD}, {4-lh}\ns_lshl_b32 s{sRB}, s{sRB}, {lr_}\ns_and_b32 s{sT0}, s{sI}, {32//hpx - 1}\ns_add_u32 s{sRB}, s{sRB}, s{sT0}")
    a(f"s_lshl_b32 s{sROT}, s{sH}, 1\ns_add_u32 s{sROT}, s{sROT}, s{sRB}\ns_mul_i32 s{sT0}, s{sROT}, 37\ns_lshr_b32 s{sT0}, s{sT0}, 8\ns_mul_i32 s{sT0}, s{sT0}, 7\ns_sub_u32 s{sROT}, s{sROT}, s{sT0}")
    a(f"s_mov_b32 s{sBUD}, 0x200000")
    a(f"s_cmp_lt_u32 s{sWV}, 4\ns_cbranch_scc1 LB")
    a(f"s_sub_u32 s{sWV}, s{sWV}, 4")

def mk_srd(a, s, p, nbytes):
    a(f"s_mov_b32 s{s}, s{p}\ns_mov_b32 s{s+1}, s{p+1}\ns_mov_b32 s{s+2}, {nbytes}\ns_mov_b32 s{s+3}, 0x20000")

def table_base(a):
    a(f"s_getpc_b64 s[{sTAB}:{sTAB+1}]")
    l = L("pc")
    a(f"{l}:")
    a(f"s_add_u32 s{sTAB}, s{sTAB}, LTAB-{l}\ns_addc_u32 s{sTAB+1}, s{sTAB+1}, 0")

SEQS = {
 0: [[0, 1, 2, 3], [4, 5, 6]],
 1: [[0, 1], [2, 3], [4, 5, 6]],
 2: [[0, 1, 2], [3, 4, 5, 6]],
 3: [[0, 1, 2, 3, 4, 5, 6]],
}
SEQ = SEQS[OPT['seq']]

class Gather:
    def __init__(self, a, n, per, R, issue, consume, vH, vHA, sHO, vNon, vCK, vTag, sLO_, sMS, sGO, mark):
        self.__dict__.update(locals())
        self.all = (1 << n) - 1
    def poll(self):
        self.a(f"buffer_load_dword v{self.vH}, v{self.vHA}, {srd(S_WS)}, s{self.sHO} offen sc1")
    def ask(self, l):
        a = self.a
        if self.sHO is None: a(f"s_mov_b32 s{self.sGO}, s{self.sMS}")
        else: a(f"v_cmp_eq_u32 vcc, v{self.vH}, v{self.vNon}\ns_and_b32 s{self.sGO}, vcc_lo, s{self.sMS}")
        for p in range(self.n):
            a(f"s_bitcmp1_b32 s{self.sGO}, {p}\ns_cbranch_scc0 {l}i{p}")
            self.issue(p)
            a(f"{l}i{p}:")
    def take(self, l, counted):
        a = self.a
        for p in range(self.n):
            r = self.R(p)
            a(f"s_bitcmp1_b32 s{self.sGO}, {p}\ns_cbranch_scc0 {l}c{p}")
            if counted: a(f"s_waitcnt vmcnt({self.per*(self.n-1-p)})")
            a(f"v_bitop3_b32 v{self.vCK}, v{r+3}, v{r+7}, v{self.vTag} bitop3:0x7e")
            for k in range(2, self.per): a(f"v_bitop3_b32 v{self.vCK}, v{self.vCK}, v{r+4*k+3}, v{self.vTag} bitop3:0xf6")
            a(f"v_cmp_lt_u32 vcc, s{self.sLO_}, v{self.vCK}\ns_cbranch_vccnz {l}c{p}")
            self.consume(p)
            a(f"s_bitset0_b32 s{self.sMS}, {p}\n{l}c{p}:")
    def first_ask(self):
        self.l = L("ga")
        if self.sHO is None:
            self.a(f"s_mov_b32 s{self.sMS}, {self.all}\ns_mov_b32 s{self.sGO}, {self.all}")
            for p in range(self.n): self.issue(p)
            return
        self.a(f"s_mov_b32 s{self.sMS}, {self.all}\ns_waitcnt vmcnt(0)")
        self.ask(self.l + "a")
    def finish(self, fast=None, first=None):
        a = self.a; l = self.l
        if fast is not None:
            for p in range(self.n):
                r = self.R(p)
                a(f"s_waitcnt vmcnt({self.per*(self.n-1-p) + getattr(self, 'extra', 0)})")
                if not first: self.consume(p)
                if p == 0: a(f"v_bitop3_b32 v{self.vCK}, v{r+3}, v{r+7}, v{self.vTag} bitop3:0x7e")
                else: a(f"v_bitop3_b32 v{self.vCK}, v{self.vCK}, v{r+3}, v{self.vTag} bitop3:0xf6\nv_bitop3_b32 v{self.vCK}, v{self.vCK}, v{r+7}, v{self.vTag} bitop3:0xf6")
                if first: first(p)
            a(f"v_cmp_lt_u32 vcc, s{self.sLO_}, v{self.vCK}\ns_cbranch_vccz {l}x")
            fast()
            self.take(l + "b", False)
        else:
            a(f"s_cmp_eq_u32 s{self.sGO}, {self.all}\ns_cbranch_scc1 {l}f\ns_waitcnt vmcnt(0)\n{l}f:")
            self.take(l + "b", True)
        self.retry()
    def retry(self):
        a = self.a; l = self.l
        a(f"{l}r:\ns_cmp_eq_u32 s{self.sMS}, 0\ns_cbranch_scc1 {l}x")
        if OPT['stamps']: a(f"v_writelane_b32 v{STV}, s{sBUD}, {self.mark}")
        a(f"s_sleep {OPT.get('slp', 8)}")
        if self.sHO is not None: self.poll()
        a(f"s_sub_u32 s{sBUD}, s{sBUD}, 8\ns_cbranch_scc1 LEND\ns_waitcnt vmcnt(0)")
        self.ask(l + "d")
        a("s_waitcnt vmcnt(0)")
        self.take(l + "e", False)
        a(f"s_branch {l}r\n{l}x:")

def gen_A(a):
    vm = VM(a)
    vW = [2, 3]; vX = [4, 5, 6, 7]; vXP = 8; vL16 = 9; vSM = 10; vOne = 11; vT = 12; vNon = 13; vT2 = 14; vZ = 29
    sXO, sWO_ = sT1, sT2
    sCW, sCX = 89, 62
    sWD, sXB = 86, 63
    sS2, sQ = 5, 3
    sMW, sMX = 88, 87
    if OPT.get('aprio', 1): a(f"s_setprio {OPT.get('aprio', 1)}")
    a(f"v_lshrrev_b32 v{vT}, 3, v0\nv_mul_u32_u24 v{vX[0]}, 896, v{vT}")
    a(f"v_and_b32 v{vT2}, 7, v0\nv_lshrrev_b32 v1, 4, v0\nv_xor_b32 v{vT2}, v{vT2}, v1\nv_lshlrev_b32 v{vT2}, 4, v{vT2}")
    a(f"v_lshl_add_u32 v{vXP}, v{vX[0]}, 6, v{vT2}\nv_add_u32 v{vX[0]}, v{vX[0]}, v{vT2}")
    a(f"v_xor_b32 v{vX[1]}, 64, v{vX[0]}\nv_add_u32 v{vX[2]}, {2*6144}, v{vX[0]}\nv_add_u32 v{vX[3]}, {3*6144}, v{vX[1]}\nv_add_u32 v{vX[1]}, 6144, v{vX[1]}")
    a(f"s_lshl_b32 s{sXB}, s{sRB}, 2\ns_add_u32 s{sXB}, s{sXB}, s{sWV}\ns_mul_i32 s{sXB}, s{sXB}, {32*896}")
    a(f"s_mov_b32 s{sCX}, s{sROT}\ns_lshl_b32 s{sMX}, s{sWV}, 12\ns_add_u32 s{sMX}, s{sMX}, {XR0}")
    a(f"v_lshrrev_b32 v{vT}, 2, v0\nv_mul_u32_u24 v{vW[0]}, 2688, v{vT}\nv_and_b32 v{vT}, 3, v0\nv_lshl_add_u32 v{vW[0]}, v{vT}, 4, v{vW[0]}")
    a(f"v_add_u32 v{vW[1]}, {16*2688-1024}, v{vW[0]}")
    a(f"s_and_b32 s{sT0}, s{sWV}, 1\ns_mul_i32 s{sWD}, s{sT0}, {32*2688}\ns_lshr_b32 s{sT0}, s{sWV}, 1\ns_add_u32 s{sT0}, s{sT0}, 1\ns_mul_i32 s{sT0}, s{sT0}, 896")
    a(f"s_add_u32 s{sWD}, s{sWD}, s{sT0}\ns_mul_i32 s{sT0}, s{sH}, 56\ns_add_u32 s{sWD}, s{sWD}, s{sT0}")
    a(f"s_lshl_b32 s{sMW}, s{sWV}, 11\ns_mov_b32 s{sCW}, s{sROT}")
    a("s_waitcnt lgkmcnt(0)")
    mk_srd(a, S_BX, 18, 2048*896); mk_srd(a, S_W, 20, 448*2688)
    def xpart(i, part):
        a(f"s_lshl_b32 s{sXO}, s{sCX}, 7\ns_add_u32 s{sXO}, s{sXO}, s{sXB}")
        a(f"s_add_u32 m0, s{sMX}, {(i % 4)*SLOT}")
        if part != 0: a(f"s_add_u32 s{sCX}, s{sCX}, 1")
        else: a("s_nop 0")
        for k in {0: (0, 1), 1: (2, 3), 2: (0, 1, 2, 3)}[part]:
            a(f"buffer_load_dwordx4 v{vX[k]}, {srd(S_BX)}, s{sXO} offen offset:{1024*k} lds")
            vm.issue(f"c{i}")
        if part != 0: a(f"s_cmp_eq_u32 s{sCX}, 7\ns_cselect_b32 s{sCX}, 0, s{sCX}")
    def xchunk(i): xpart(i, 2)
    def wchunk(j):
        a(f"s_mul_i32 s{sWO_}, s{sCW}, {64*2688}\ns_add_u32 m0, s{sMW}, {WKV + j*8192}\ns_add_u32 s{sWO_}, s{sWO_}, s{sWD}")
        a(f"s_add_u32 s{sCW}, s{sCW}, 1")
        for k in range(2):
            a(f"buffer_load_dwordx4 v{vW[k]}, {srd(S_W)}, s{sWO_} offen offset:{1024*k} lds")
        a(f"s_cmp_eq_u32 s{sCW}, 7\ns_cselect_b32 s{sCW}, 0, s{sCW}")
        vm.issue(f"c{j}", 2)
    xchunk(0); wchunk(0)
    a(f"s_lshr_b32 s{sT0}, s{sI}, 2\ns_lshl_b32 s{sS2}, s{sXCD}, 3\ns_add_u32 s{sS2}, s{sS2}, s{sT0}\ns_and_b32 s{sQ}, s{sI}, 3")
    mk_srd(a, S_AX, 8, 2048*896)
    def load_m1(tag):
        a(f"global_load_dwordx4 v[20:23], v{vL16}, s[{sTAB}:{sTAB+1}] offset:{T_M1}")
        a(f"global_load_dwordx4 v[24:27], v{vL16}, s[{sTAB}:{sTAB+1}] offset:{T_M1+1024}")
        vm.issue(tag, 2)
    sXI, sXS = 69, 70
    def xp_steps():
        def step(n):
            def f():
                if n == 0:
                    a(f"s_and_b32 s{sT0}, s{sWV}, 1\ns_lshl_b32 s{sT0}, s{sT0}, 6\nv_xor_b32 v{vXP}, s{sT0}, v{vXP}")
                    a(f"s_lshl_b32 s{sXS}, s{sWV}, 9\ns_add_u32 s{sXS}, s{sXS}, s{sS2}\ns_mul_i32 s{sXS}, s{sXS}, 896\ns_lshl_b32 s{sXI}, s{sQ}, {1 if OPT.get('rot2', 1) else 31}\ns_and_b32 s{sXI}, s{sXI}, 7")
                else:
                    a(f"s_add_u32 s{sXI}, s{sXI}, 1\ns_cmp_eq_u32 s{sXI}, 7\ns_cselect_b32 s{sXI}, 0, s{sXI}")
                a(f"s_lshl_b32 s{sT0}, s{sXI}, 2\ns_add_u32 s{sT0}, s{sT0}, s{sWV}\ns_lshl_b32 s{sT0}, s{sT0}, 10\ns_add_u32 m0, s{sT0}, {XP}\ns_lshl_b32 s{sXO}, s{sXI}, 7\ns_add_u32 s{sXO}, s{sXO}, s{sXS}")
                a(f"buffer_load_dwordx4 v{vXP}, {srd(S_AX)}, s{sXO} offen lds")
                vm.issue("xp")
            return f
        return [step(n) for n in range(7)]
    def load_xp():
        for f in xp_steps(): f()
    a(f"v_lshlrev_b32 v{vL16}, 4, v0")
    table_base(a)
    XPOS = OPT.get('xpos', 10)
    if OPT['stamps']:
        a(f"v_mov_b32 v{STV}, 0\nv_writelane_b32 v{STV}, s{ST0+2}, 0"); nst['A'] = 1
    a(f"v_mov_b32 v{vZ}, 0")
    ln = L("non")
    a(f"s_or_b32 s{sT0}, s2, s{sWV}\ns_cmp_lg_u32 s{sT0}, 0\ns_cbranch_scc1 {ln}")
    a(f"s_or_b32 s{sT0}, s{ST0}, 1\nv_mov_b32 v{vT}, s{sT0}")
    a(f"s_mov_b64 exec, 1\nglobal_store_dword v{vZ}, v{vT}, s[28:29] sc1\ns_mov_b64 exec, -1")
    a(f"{ln}:")
    if OPT['lst']: stamp(a, 'A', 'first issued')
    def load_wq():
        a(f"s_mul_i32 s{sT5}, s{sWV}, {16*2688}\ns_mul_i32 s{sT0}, s{sH}, 56\ns_add_u32 s{sT5}, s{sT5}, s{sT0}\ns_lshl_b32 s{sT0}, s{sWV}, 10")
        a(f"s_add_u32 m0, s{sT0}, {WQ}\ns_mov_b32 s{sT4}, s{sROT}")
        for i in range(7):
            a(f"s_mul_i32 s{sWO_}, s{sT4}, {64*2688}\ns_add_u32 s{sWO_}, s{sWO_}, s{sT5}")
            a(f"buffer_load_dwordx4 v{vW[0]}, {srd(S_W)}, s{sWO_} offen lds")
            if i < 6:
                a(f"s_add_u32 m0, m0, 4096")
                a(f"s_add_u32 s{sT4}, s{sT4}, 1\ns_cmp_eq_u32 s{sT4}, 7\ns_cselect_b32 s{sT4}, 0, s{sT4}")
        vm.issue("wq", 7)
    FG = 128; GEN = 80; K2 = 96; vE = 98
    a(f"s_lshl_b32 s{sT0}, s{sQ}, 6\ns_and_b32 s{sT4}, s{sWV}, 1\ns_lshl_b32 s{sT4}, s{sT4}, 5\ns_add_u32 s{sT0}, s{sT0}, s{sT4}")
    a(f"v_and_b32 v{vE}, 31, v0\nv_add_u32 v{vE}, s{sT0}, v{vE}")
    a(f"s_cmp_lt_u32 s{sWV}, 2\ns_cselect_b32 s{sT4}, 0, 0x3e800000")
    a(f"s_mov_b32 s{sT5}, {hex(f32(1/448))}")
    a(f"v_cvt_f32_u32 v1, v{vE}\nv_mul_f32 v1, s{sT5}, v1\nv_sin_f32 v{vT}, v1\nv_cos_f32 v{vT2}, v1")
    a(f"v_lshrrev_b32 v99, 5, v0\nv_mul_u32_u24 v99, 224, v99\nv_add_u32 v99, 444, v99\nv_mul_u32_u24 v99, v99, v{vE}")
    a(f"v_mul_f32 v{vT}, v{vT}, v{vT}\nv_mul_f32 v{vT2}, v{vT2}, v{vT2}")
    a(f"v_cmp_lt_f32 vcc, v{vT}, v{vT2}\nv_fma_f32 v{vT}, v{vT}, -4.0, 2.0\nv_fma_f32 v{vT2}, v{vT2}, 4.0, -2.0\nv_cndmask_b32 v{K2}, v{vT2}, v{vT}, vcc")
    a(f"v_mov_b32 v100, s{sT4}")
    for k in range(4):
        r = GEN + 12 + k
        a(f"v_lshrrev_b32 v1, 6, v99\nv_mul_u32_u24 v1, 9363, v1\nv_lshrrev_b32 v1, 16, v1\nv_mul_u32_u24 v1, 448, v1\nv_sub_u32 v1, v99, v1")
        a(f"v_cvt_f32_u32 v1, v1\nv_fma_f32 v1, v1, s{sT5}, v100\nv_cos_f32 v{r}, v1")
        if k < 3: a(f"v_add_u32 v99, v99, v{vE}")
    lg_ = L("gen")
    a(f"s_mov_b32 s{sT0}, 0\n{lg_}:")
    p2, p1 = GEN+12, GEN+14
    for i in range(2):
        g = GEN + 8*i
        for j in range(4):
            d = g + 2*j
            a(f"v_pk_fma_f32 v[{d}:{d+1}], v[{K2}:{K2+1}], v[{p1}:{p1+1}], v[{p2}:{p2+1}] op_sel_hi:[0,1,1] neg_lo:[0,0,1] neg_hi:[0,0,1]")
            p2, p1 = p1, d
    a(f"s_set_gpr_idx_on s{sT0}, gpr_idx(DST)")
    for j in range(8): a(f"v_cvt_pk_bf16_f32 v{FG+j}, v{GEN+2*j}, v{GEN+2*j+1}")
    a(f"s_set_gpr_idx_off\ns_add_u32 s{sT0}, s{sT0}, 8\ns_cmp_lt_u32 s{sT0}, {OPT.get('genn', 112)}\ns_cbranch_scc1 {lg_}")
    if OPT['lst']: stamp(a, 'A', 'gen')
    mk_srd(a, S_WO, 24, 448*896); mk_srd(a, S_WS, 30, 0x10000000); mk_srd(a, S_OUT, 26, 2048*1792)
    aXP = 48
    a(f"v_and_b32 v1, 31, v0\nv_lshrrev_b32 v{vT2}, 5, v0\nv_bfe_u32 v{vT}, v0, 1, 3\nv_lshlrev_b32 v{vT2}, 2, v{vT2}\nv_xor_b32 v{vT}, v{vT}, v{vT2}")
    a(f"v_lshlrev_b32 v1, 7, v1\nv_lshl_add_u32 v1, v{vT}, 4, v1\nv_add_u32 v1, {XP}, v1")
    a(f"v_mul_u32_u24 v{vT2}, {3*1024}, v{vT2}\nv_add_u32 v1, v1, v{vT2}")
    a(f"v_lshrrev_b32 v{vT2}, 5, v0\nv_lshlrev_b32 v{vT2}, 12, v{vT2}")
    for k in range(8):
        a(f"v_xor_b32 v{aXP+k}, {16*k}, v1")
        if k >= 4: a(f"v_add_u32 v{aXP+k}, v{aXP+k}, v{vT2}")
    sCL, sQ2, sTQ, sUA, sUB, sUF = 64, 4, 65, 66, 67, 68
    vTT = 28; FR, FI, NFI = 32, 40, 240
    def fs_gen():
        a(f"s_lshr_b32 s{sCL}, s{sI}, 4\ns_lshl_b32 s{sT0}, s{sXCD}, 1\ns_add_u32 s{sCL}, s{sCL}, s{sT0}\ns_lshr_b32 s{sQ2}, s{sI}, 2\ns_and_b32 s{sQ2}, s{sQ2}, 3\ns_and_b32 s{sTQ}, s{sI}, 3")
        a(f"s_cmp_lt_u32 s{sTQ}, 2\ns_cselect_b32 s{sT4}, 16, -992\ns_cmp_eq_u32 s{sCL}, 0\ns_cselect_b32 s{sT4}, s{sT4}, s{sCL}")
        a(f"s_lshl_b32 s{sT0}, s{sTQ}, 9\ns_add_u32 s{sT0}, s{sT0}, s{sT4}")
        a(f"v_and_b32 v1, 15, v0\nv_lshlrev_b32 v1, 5, v1\nv_add_u32 v{vTT}, s{sT0}, v1")
        a(f"v_cvt_f32_u32 v30, v{vTT}\nv_mul_f32 v30, {hex(f32(1/2048))}, v30\nv_lshrrev_b32 v1, 4, v0\nv_lshlrev_b32 v1, 3, v1\nv_cvt_f32_u32 v1, v1\nv_mul_f32 v31, v30, v1")
        a(f"s_mov_b32 s{sT4}, 0x80008000\ns_mov_b32 s{sT0}, {hex(f32(24.0))}")
        for ks in range(2):
            if ks: a(f"v_fma_f32 v31, v30, s{sT0}, v31")
            for jp in range(4):
                a(f"v_cos_f32 v248, v31\nv_sin_f32 v250, -v31\nv_add_f32 v31, v31, v30\nv_cos_f32 v249, v31\nv_sin_f32 v251, -v31\nv_add_f32 v31, v31, v30")
                a(f"v_cvt_pk_bf16_f32 v{FR+4*ks+jp}, v248, v249\nv_cvt_pk_bf16_f32 v{FI+4*ks+jp}, v250, v251\nv_xor_b32 v{NFI+4*ks+jp}, s{sT4}, v{FI+4*ks+jp}")
    ACC, XR = 64, 96
    def a1_slice(i0_, i1_):
        n = i1_ - i0_
        for i in range(i0_, i1_):
            a(f"ds_read_b128 v[{XR+4*(i-i0_)}:{XR+4*(i-i0_)+3}], v{aXP+(i&7)} offset:{(i>>3)*4096}")
        for i in range(i0_, i1_):
            a(f"s_waitcnt lgkmcnt({i1_-1-i})")
            mfma32(a, ACC, XR+4*(i-i0_), FG+4*i, ACC if i else None)
    aSW, aSR, vUO = 56, 60, 61
    REST = None
    vWO = [16, 17, 18, 19]
    def u_addr():
        a(f"s_lshl_b32 s{sT0}, s{sWV}, 11\ns_add_u32 s{sT0}, s{sT0}, {STG}")
        a(f"v_and_b32 v1, 31, v0\nv_lshlrev_b32 v1, 6, v1\nv_bfe_u32 v{vT}, v0, 1, 2\nv_lshl_add_u32 v1, v{vT}, 4, v1\nv_lshrrev_b32 v{vT}, 5, v0\nv_lshl_add_u32 v1, v{vT}, 3, v1\nv_add_u32 v1, s{sT0}, v1")
        for k in range(4): a(f"v_xor_b32 v{aSW+k}, {16*k}, v1")
        a(f"v_bfe_u32 v{vT}, v0, 3, 2\nv_and_b32 v1, 3, v0\nv_xor_b32 v{vT}, v{vT}, v1\nv_lshrrev_b32 v{aSR}, 2, v0\nv_lshlrev_b32 v{aSR}, 6, v{aSR}\nv_lshl_add_u32 v{aSR}, v{vT}, 4, v{aSR}\nv_add_u32 v{aSR}, s{sT0}, v{aSR}")
        a(f"s_bfe_u32 s{sT0}, s{sS2}, 0x10001\ns_bfe_u32 s{sT4}, s{sS2}, 0x10003\ns_lshl_b32 s{sT4}, s{sT4}, 1\ns_or_b32 s{sT0}, s{sT0}, s{sT4}\ns_lshl_b32 s{sT0}, s{sT0}, 5")
        a(f"s_and_b32 s{sT4}, s{sWV}, 1\ns_lshl_b32 s{sT4}, s{sT4}, 6\ns_xor_b32 s{sT0}, s{sT0}, s{sT4}")
        a(f"v_lshlrev_b32 v1, 4, v1\nv_xor_b32 v1, s{sT0}, v1\nv_lshrrev_b32 v{vT}, 3, v0\nv_lshl_add_u32 v1, v{vT}, 17, v1\nv_bfe_u32 v{vT}, v0, 2, 1\nv_lshl_add_u32 v{vUO}, v{vT}, 13, v1")
        a(f"s_lshl_b32 s{sT0}, s{sQ}, 1\ns_lshr_b32 s{sT4}, s{sWV}, 1\ns_add_u32 s{sT0}, s{sT0}, s{sT4}")
        a(f"s_lshl_b32 s{sUA}, s{sT0}, 14\ns_lshl_b32 s{sT4}, s{sS2}, 7\ns_add_u32 s{sUA}, s{sUA}, s{sT4}\ns_add_u32 s{sUA}, s{sUA}, {W_U}\ns_add_u32 s{sUB}, s{sUA}, 0x100000")
        a(f"v_lshrrev_b32 v1, 3, v0\nv_bfe_u32 v{vT}, v0, 4, 1\nv_lshlrev_b32 v{vT}, 2, v{vT}\nv_and_b32 v{vT2}, 7, v0\nv_xor_b32 v{vT}, v{vT}, v{vT2}\nv_mul_u32_u24 v1, 896, v1\nv_lshl_add_u32 v{vWO[0]}, v{vT}, 4, v1")
    def stage1():
        for j in range(8): a(f"v_cvt_pk_bf16_f32 v{GEN+j}, v{ACC+2*j}, v{ACC+2*j+1}")
        mfma32(a, ACC, GEN, 20, None)
        mfma32(a, ACC, GEN+4, 24, ACC)
        lwait(a, C_A1D, vSM, vT)
        a("s_nop 7")
        for j in range(8): a(f"v_cvt_pk_bf16_f32 v{GEN+j}, v{ACC+2*j}, v{ACC+2*j+1}")
        for k in range(4): a(f"ds_write_b64 v{aSW+k}, v[{GEN+2*k}:{GEN+2*k+1}]")
        a("s_waitcnt lgkmcnt(0)")
        a(f"ds_read_b128 v[{XR}:{XR+3}], v{aSR}\nds_read_b128 v[{XR+4}:{XR+7}], v{aSR} offset:1024")
        a(f"v_and_b32 v1, 3, v0\nv_lshlrev_b32 v1, 3, v1\nv_lshrrev_b32 v1, v1, v{vNon}\ns_mov_b32 s{sT0}, 0x00010001")
        for k in range(4):
            a(f"v_bfe_u32 v{vT}, v1, {2*k}, 2\nv_mul_u32_u24 v{vT}, 0x8001, v{vT}\nv_and_b32 v{104+k}, s{sT0}, v{vT}")
        a("s_waitcnt lgkmcnt(0)")
        for k in range(8):
            a(f"v_lshrrev_b32 v{vT}, 1, v{XR+k}\nv_bitop3_b32 v{vT}, v{vT}, v{XR+k}, s{sT0} bitop3:0x80\nv_add_u32 v{XR+k}, v{XR+k}, v{vT}\nv_bfi_b32 v{XR+k}, s{sT0}, v{104+(k&3)}, v{XR+k}")
        a(f"buffer_store_dwordx4 v[{XR}:{XR+3}], v{vUO}, {srd(S_WS)}, s{sUA} offen sc1")
        a(f"buffer_store_dwordx4 v[{XR+4}:{XR+7}], v{vUO}, {srd(S_WS)}, s{sUB} offen sc1")
        vm.issue("u", 2)
        signal(a, C_A1E, vSM, vOne)
    def warm():
        lw = L("wm")
        a(f"s_cmp_lt_u32 s{sWV}, 2\ns_cbranch_scc1 {lw}a\ns_cmp_eq_u32 s{sWV}, 2\ns_cbranch_scc1 {lw}b")
        a(f"s_and_b32 s{sT0}, s{sRB}, 7\ns_mul_i32 s{sT0}, s{sT0}, {56*2688}\ns_mul_i32 s{sT4}, s{sH}, 56\ns_add_u32 s{sT0}, s{sT0}, s{sT4}")
        a(f"v_mul_u32_u24 v1, 2688, v0\nbuffer_load_dword v30, v1, {srd(S_W)}, s{sT0} offen\nbuffer_load_dword v31, v1, {srd(S_W)}, s{sT0} offen offset:52\ns_branch {lw}x")
        a(f"{lw}b:")
        a(f"v_lshrrev_b32 v1, 3, v0\nv_mul_u32_u24 v1, 896, v1\nv_lshlrev_b32 v1, 6, v1\nv_and_b32 v30, 7, v0\nv_min_u32 v30, 6, v30\nv_lshl_add_u32 v1, v30, 7, v1")
        a(f"s_lshl_b32 s{sT0}, s{sQ}, 9\ns_add_u32 s{sT0}, s{sT0}, s{sS2}\ns_mul_i32 s{sT0}, s{sT0}, 896")
        a(f"buffer_load_dword v30, v1, {srd(S_AX)}, s{sT0} offen\nbuffer_load_dword v31, v1, {srd(S_AX)}, s{sT0} offen\ns_branch {lw}x")
        a(f"{lw}a:")
        a(f"s_lshl_b32 s{sT0}, s{sI}, 1\ns_add_u32 s{sT0}, s{sT0}, s{sWV}\ns_mul_i32 s{sT0}, s{sT0}, {49*128}\nv_min_u32 v1, 48, v0\nv_lshlrev_b32 v1, 7, v1")
        a(f"buffer_load_dword v30, v1, {srd(S_WO)}, s{sT0} offen\nbuffer_load_dword v31, v1, {srd(S_WO)}, s{sT0} offen")
        a(f"{lw}x:")
        vm.issue("pf", 2)
    spf = []
    if OPT.get('spf', 0):
        sPA, sPB = 94, 96
        a(f"s_mul_i32 s{sT0}, s{sI}, 98\ns_mul_i32 s{sT4}, s{sWV}, 49\ns_lshr_b32 s{sT4}, s{sT4}, 1\ns_add_u32 s{sT0}, s{sT0}, s{sT4}\ns_lshl_b32 s{sT0}, s{sT0}, 7\ns_add_u32 s{sPA}, s24, s{sT0}\ns_addc_u32 s{sPA+1}, s25, 0")
        a(f"s_lshl_b32 s{sT0}, s{sQ}, 2\ns_add_u32 s{sT0}, s{sT0}, s{sWV}\ns_lshl_b32 s{sT0}, s{sT0}, 7\ns_add_u32 s{sT0}, s{sT0}, s{sS2}\ns_mul_i32 s{sT0}, s{sT0}, 896\ns_add_u32 s{sPB}, s8, s{sT0}\ns_addc_u32 s{sPB+1}, s9, 0")
        halves = (0, 64) if OPT.get('spf', 0) == 2 else (0,)
        spf += [f"s_load_dword s98, s[{sPB}:{sPB+1}], {r*57344 + k*128 + hf}" for r in range(2) for k in range(7) for hf in halves]
        spf += [f"s_load_dword s98, s[{sPA}:{sPA+1}], {k*128 + hf}" for k in range(25) for hf in halves]
    u_addr()
    if OPT['lst']: stamp(a, 'A', 'addr')
    def stream(halves):
        seq = []
        for c in range(1, 7): seq += [(wchunk, c), (lambda c_: xpart(c_, 0), c), (lambda c_: xpart(c_, 1), c)] if OPT.get('wf', 0) else [(lambda c_: xpart(c_, 0), c), (lambda c_: xpart(c_, 1), c), (wchunk, c)]
        pos = 0
        def upto(n):
            nonlocal pos
            while pos < min(n, len(seq)):
                f, c = seq[pos]; f(c); pos += 1
        upto(halves - 3)
        for c in range(7):
            vm.wait(f"c{c}")
            if c == 6: a("s_waitcnt lgkmcnt(0)")
            a("s_barrier")
            upto(3*c + halves)
            if c == 1: a(f"global_load_dword v{vNon}, v{vZ}, s[28:29] sc1"); vm.issue("non")
            if c == 5:
                vm.wait("non")
                lr = L("nr")
                a(f"{lr}:\nv_readfirstlane_b32 s{sNON}, v{vNon}\ns_cmp_lg_u32 s{sNON}, 0\ns_cbranch_scc1 {lr}x")
                a(f"s_sub_u32 s{sBUD}, s{sBUD}, 64\ns_cbranch_scc1 {lr}x")
                a(f"global_load_dword v{vNon}, v{vZ}, s[28:29] sc1\ns_waitcnt vmcnt(0)\ns_branch {lr}")
                a(f"{lr}x:")
                a(f"ds_write_b32 v{vSM}, v{vNon} offset:{NONCE}")
    HC, HN = OPT.get('hc', 6), OPT.get('hn', 4)
    if HC == HN: stream(HC)
    else:
        ls = L("cl")
        q0 = list(vm.q)
        a(f"s_lshr_b32 s{sT0}, 0xaa54, s{sH}\ns_bitcmp1_b32 s{sT0}, 0\ns_cbranch_scc1 {ls}")
        stream(HN)
        a(f"s_branch {ls}x\n{ls}:")
        vm.q = list(q0)
        stream(HC)
        a(f"{ls}x:")
    vm.q = []
    load_wq()
    if OPT.get('trunc'):
        a("s_waitcnt vmcnt(0)"); stamp(a, 'A', 'wq landed'); stamps_out(a, 'A'); a("s_endpgm"); return
    sWS, sWM = 60, 61
    LATE = 1
    sWI = 71
    def wo_steps():
        def step(n):
            def f():
                if n == 0:
                    a(f"s_mul_i32 s{sWS}, s{sWV}, 7168\ns_add_u32 s{sWM}, s{sWS}, {WOA}\ns_mul_i32 s{sWS}, s{sWS}, 7\ns_and_b32 s{sT0}, s{sI}, 7\ns_lshl_b32 s{sT0}, s{sT0}, 7\ns_add_u32 s{sWS}, s{sWS}, s{sT0}")
                    a(f"s_lshr_b32 s{sWI}, s{sI}, 3\ns_mul_i32 s{sWI}, s{sWI}, {7 if OPT.get('rot2', 1) else 0}\ns_lshr_b32 s{sWI}, s{sWI}, 1")
                else:
                    a(f"s_add_u32 s{sWI}, s{sWI}, 1\ns_cmp_eq_u32 s{sWI}, 14\ns_cselect_b32 s{sWI}, 0, s{sWI}")
                a(f"s_cmp_ge_u32 s{sWI}, 7\ns_cselect_b32 s{sT0}, 21, 0\ns_cselect_b32 s{sT4}, {WOB-WOA-7168}, 0\ns_add_u32 s{sT0}, s{sT0}, s{sWI}\ns_mul_i32 s{sT0}, s{sT0}, 7168\ns_add_u32 s{sT0}, s{sT0}, s{sWS}")
                a(f"s_add_u32 s{sT4}, s{sT4}, s{sWM}\ns_lshl_b32 s{sT5}, s{sWI}, 10\ns_add_u32 m0, s{sT4}, s{sT5}\ns_nop 0")
                a(f"buffer_load_dwordx4 v{vWO[0]}, {srd(S_WO)}, s{sT0} offen lds")
                vm.issue("wo")
            return f
        return [step(n) for n in range(14)]
    a("s_setprio 0")
    a(f"s_and_b32 s{sT0}, s{sI}, 7\ns_cmp_eq_u32 s{sT0}, 7\ns_cselect_b32 s{S_WO+2}, 0, s{S_WO+2}")
    vTag, vPL, vKFW, ASEL, vCK = 4, 5, 6, 124, 7
    sLO_, sPL, sMS, sGO = 86, 87, 88, 89
    KAS = [120, 108]
    PRL = [20, 32, 40, 240, 248, 80, 88, 112]
    xs = xp_steps() if XPOS == 10 else []
    wsx = wo_steps()
    for _ in range(OPT.get('x1', 2)):
        if xs: xs.pop(0)()
    a(f"s_mul_i32 s{sT0}, s{sNON}, 0x9e3779b1\nv_and_b32 v1, 3, v0\nv_cmp_lt_u32 vcc, 1, v1\nv_mov_b32 v{vT}, s{sT0}\nv_and_b32 v{vT2}, 1, v0\nv_cndmask_b32 v{vT}, v{vNon}, v{vT}, vcc")
    a(f"v_lshlrev_b32 v{vT2}, 4, v{vT2}\nv_xor_b32 v{vT2}, 16, v{vT2}\nv_lshlrev_b32 v{vT}, v{vT2}, v{vT}\nv_and_b32 v{vTag}, 0xbfff0000, v{vT}\ns_mov_b32 s{sLO_}, 0xffff")
    a(f"v_and_b32 v{vT}, 15, v0\nv_bfe_u32 v{vT2}, v0, 4, 1\nv_lshlrev_b32 v1, 4, v{vT}\nv_lshl_add_u32 v1, v{vT2}, 9, v1\nv_lshrrev_b32 v{vCK}, 5, v0")
    a(f"v_lshl_add_u32 v{vPL}, v{vCK}, 12, v1\nv_lshl_add_u32 v{vKFW}, v{vCK}, 3, v1\ns_lshl_b32 s{sT0}, s{sWV}, 10\ns_add_u32 s{sT4}, s{sT0}, {KVF}\nv_add_u32 v{vKFW}, s{sT4}, v{vKFW}")
    a(f"s_lshl_b32 s{sPL}, s{sH}, 16\ns_add_u32 s{sPL}, s{sPL}, s{sT0}\ns_add_u32 s{sPL}, s{sPL}, {W_KVP}")
    a(f"v_lshlrev_b32 v{vT2}, 2, v{vT2}\nv_sub_u32 v{vT}, v{vT}, v{vT2}")
    a(f"v_bfe_u32 v{vT2}, v{vT}, 1, 1\nv_bfe_u32 v1, v{vT}, 3, 1\nv_lshl_or_b32 v{vT2}, v1, 1, v{vT2}\nv_and_or_b32 v{vT2}, v{vT}, 4, v{vT2}")
    a(f"v_and_b32 v{vT}, 1, v{vT}\nv_lshlrev_b32 v{vT}, 4, v{vT}\nv_mov_b32 v1, 0x3f80\nv_lshlrev_b32 v{vT}, v{vT}, v1")
    for k in range(4): a(f"v_cmp_eq_u32 vcc, {k}, v{vT2}\nv_cndmask_b32 v{ASEL+k}, 0, v{vT}, vcc")
    def kazero():
        for k in range(8): a(f"v_mov_b32 v{KAS[k>>2]+(k&3)}, 0")
    kazero()
    lwait(a, C_G, vSM, vT)
    for _ in range(OPT.get('w1', 4)): wsx.pop(0)()
    vm.wait("wq"); signal(a, C_WQ, vSM, vOne)
    stamp(a, 'A', 'wq landed')
    while xs: xs.pop(0)()
    for _ in range(len(wsx) - OPT.get('wl', 0)): wsx.pop(0)()
    vm.wait("xp"); signal(a, C_XP, vSM, vOne)
    stamp(a, 'A', 'wo issued')
    A1PRE = OPT.get('a1pre', 0)
    NR = 3
    A1N = OPT.get('a1n', 28)
    def a1_loop(i0_, i1_):
        for i in range(i0_, min(i0_ + NR, i1_)):
            a(f"ds_read_b128 v[{XR+4*(i%NR)}:{XR+4*(i%NR)+3}], v{aXP+(i&7)} offset:{(i>>3)*4096}")
        for i in range(i0_, i1_):
            a(f"s_waitcnt lgkmcnt({min(NR-1, i1_-1-i)})")
            mfma32(a, ACC, XR+4*(i % NR), FG+4*i, ACC if i else None)
            if i + NR < i1_:
                n = i + NR
                a(f"ds_read_b128 v[{XR+4*(n%NR)}:{XR+4*(n%NR)+3}], v{aXP+(n&7)} offset:{(n>>3)*4096}")
    if A1PRE:
        lwait(a, C_XP, vSM, vT); a1_loop(0, A1PRE)
    lwait(a, C_QH, vSM, vT)
    def p_issue(p):
        a(f"s_add_u32 s{sT4}, s{sPL}, {8192*p}")
        for dt in range(2):
            r = PRL[p] + 4*dt
            a(f"buffer_load_dwordx4 v[{r}:{r+3}], v{vPL}, {srd(S_WS)}, s{sT4} offen offset:{256*dt} sc1")
    G1 = Gather(a, 8, 2, lambda p: PRL[p], p_issue, lambda p: [mfma16(a, KAS[dt], ASEL, PRL[p]+4*dt, KAS[dt]) for dt in range(2)], None, None, None, vNon, vCK, vTag, sLO_, sMS, sGO, 22)
    G1.first_ask()
    stamp(a, 'A', 'partials asked')
    nlate = len(wsx) if OPT.get('wb', 1) else 0
    for _ in range(nlate): wsx.pop(0)()
    G1.extra = nlate
    stamp(a, 'A', 'wo rest issued')
    lwait(a, C_XP, vSM, vT)
    a1_loop(A1PRE, A1N)
    stamp(a, 'A', 'A1 part')
    a("s_setprio 3")
    G1.finish(fast=lambda: (a("s_nop 7"), kazero()))
    a("s_nop 7")
    a(f"v_cvt_pk_bf16_f32 v80, v{KAS[0]}, v{KAS[0]+1}\nv_cvt_pk_bf16_f32 v81, v{KAS[0]+2}, v{KAS[0]+3}\nv_cvt_pk_bf16_f32 v82, v{KAS[1]}, v{KAS[1]+1}\nv_cvt_pk_bf16_f32 v83, v{KAS[1]+2}, v{KAS[1]+3}")
    a(f"ds_write_b64 v{vKFW}, v[80:81]\nds_write_b64 v{vKFW}, v[82:83] offset:256")
    a("s_waitcnt lgkmcnt(0)"); signal(a, C_B2, vSM, vOne)
    a("s_setprio 0")
    vm.q = ["wo"]*nlate
    if not wsx and not nlate: signal(a, C_WO, vSM, vOne)
    stamp(a, 'A', 'kv ready')
    load_m1("m1")
    if nlate and OPT.get('wsig', 0) == 0:
        vm.wait("wo"); signal(a, C_WO, vSM, vOne); stamp(a, 'A', 'wo landed')
    if wsx:
        while wsx: wsx.pop(0)()
    a1_loop(A1N, 28)
    signal(a, C_A1D, vSM, vOne)
    if "wo" in vm.q:
        vm.wait("wo"); signal(a, C_WO, vSM, vOne)
    vm.wait("m1")
    stage1()
    stamp(a, 'A', 'U stored')
    fs_gen()
    def u_phase():
        sUL = 62
        a(f"s_lshl_b32 s{sUL}, s{sCL}, 2\ns_add_u32 s{sUL}, s{sUL}, s{sQ2}\ns_lshl_b32 s{sUL}, s{sUL}, 2\ns_add_u32 s{sUL}, s{sUL}, s{sWV}\ns_lshl_b32 s{sUL}, s{sUL}, 13\ns_add_u32 s{sUL}, s{sUL}, {W_U}\ns_add_u32 s{sUL+1}, s{sUL}, 4096")
        a(f"s_lshl_b32 s{sT1}, s{sWV}, 13\ns_add_u32 s{sT1}, s{sT1}, {UT}\nv_add_u32 v62, s{sT1}, v{vL16}")
        a(f"v_lshrrev_b32 v1, 4, v0\nv_bfe_u32 v{vT}, v0, 2, 2\nv_lshl_add_u32 v{vT2}, v1, 3, v{vT}\nv_lshlrev_b32 v{aU}, 7, v{vT2}")
        a(f"v_and_b32 v1, 1, v1\nv_lshlrev_b32 v1, 1, v1\nv_lshrrev_b32 v{vT}, 1, v{vT}\nv_or_b32 v1, v1, v{vT}\nv_xor_b32 v1, s{sWV}, v1\nv_lshl_add_u32 v{aU}, v1, 5, v{aU}")
        a(f"v_and_b32 v1, 3, v0\nv_lshl_add_u32 v{aU}, v1, 3, v{aU}\nv_add_u32 v{aU}, {UT}, v{aU}")
        a(f"v_bfe_u32 v{vT}, v0, 4, 1\nv_lshlrev_b32 v{vT}, 1, v{vT}\nv_and_b32 v1, 3, v0\nv_xor_b32 v1, v1, v{vT}\nv_lshlrev_b32 v1, 3, v1\nv_lshrrev_b32 v1, v1, v{vNon}\ns_mov_b32 s{sT5}, 0x00010001")
        for k in range(4):
            a(f"v_bfe_u32 v{vT}, v1, {2*k}, 2\nv_mul_u32_u24 v{vT}, 0x8001, v{vT}\nv_and_b32 v{104+k}, s{sT5}, v{vT}")
        lwait(a, C_A1E, vSM, vT)
        lwait(a, C_O if OPT.get('uwait', 1) == 1 else C_B3, vSM, vT)
        if OPT.get('us', 6): a(f"s_sleep {OPT.get('us', 6)}")
        lu = L("ul")
        a(f"{lu}:")
        for k in range(8):
            a(f"buffer_load_dwordx4 v[{UL+4*k}:{UL+4*k+3}], v{vL16}, {srd(S_WS)}, s{sUL if k < 4 else sUL+1} offen offset:{1024*(k&3)} sc1")
        stamp(a, 'A', 'U asked')
        for k in range(8):
            r = UL + 4*k
            a(f"s_waitcnt vmcnt({7-k})")
            for j in range(4): a(f"v_xor_b32 v{r+j}, v{r+j}, v{104+j}")
            a(f"ds_write_b128 v62, v[{r}:{r+3}] offset:{1024*k}")
            a(f"v_or3_b32 v{vT}, v{r}, v{r+1}, v{r+2}")
            a(f"v_or_b32 v{vCK}, v{vT}, v{r+3}" if k == 0 else f"v_or3_b32 v{vCK}, v{vCK}, v{vT}, v{r+3}")
        a(f"v_and_b32 v{vCK}, s{sT5}, v{vCK}\nv_cmp_ne_u32 vcc, 0, v{vCK}\ns_cbranch_vccz {lu}x")
        if OPT['stamps']: a(f"v_writelane_b32 v{STV}, s{sBUD}, 23")
        a(f"{lu}r:\ns_mov_b32 s{sMS}, 0\ns_waitcnt lgkmcnt(0)")
        for k in range(8):
            r = UL + 4*k
            a(f"v_or3_b32 v{vCK}, v{r}, v{r+1}, v{r+2}\nv_or_b32 v{vCK}, v{vCK}, v{r+3}")
            a(f"v_and_b32 v{vCK}, s{sT5}, v{vCK}\nv_cmp_ne_u32 vcc, 0, v{vCK}\ns_cbranch_vccz {lu}k{k}")
            a(f"buffer_load_dwordx4 v[{r}:{r+3}], v{vL16}, {srd(S_WS)}, s{sUL if k < 4 else sUL+1} offen offset:{1024*(k&3)} sc1\ns_bitset1_b32 s{sMS}, {k}\n{lu}k{k}:")
        a(f"s_cmp_eq_u32 s{sMS}, 0\ns_cbranch_scc1 {lu}w\ns_waitcnt vmcnt(0)")
        for k in range(8):
            r = UL + 4*k
            a(f"s_bitcmp1_b32 s{sMS}, {k}\ns_cbranch_scc0 {lu}m{k}")
            for j in range(4): a(f"v_xor_b32 v{r+j}, v{r+j}, v{104+j}")
            a(f"{lu}m{k}:")
        a(f"s_sleep {OPT.get('slp', 8)}\ns_sub_u32 s{sBUD}, s{sBUD}, 8\ns_cbranch_scc0 {lu}r\ns_branch LEND\n{lu}w:")
        for k in range(8): a(f"ds_write_b128 v62, v[{UL+4*k}:{UL+4*k+3}] offset:{1024*k}")
        a(f"{lu}x:")
        a("s_waitcnt lgkmcnt(0)"); signal(a, C_U, vSM, vOne)
    UL = 192; aU = 63
    vYW, vYR, vD, vM, vE0 = 48, 52, 53, 54, 55
    def y_addr():
        a(f"v_and_b32 v1, 15, v0\nv_lshlrev_b32 v{vYW}, 8, v1\nv_and_b32 v1, 7, v1\nv_lshrrev_b32 v{vT}, 5, v0\ns_lshl_b32 s{sT0}, s{sWV}, 1\nv_add_u32 v{vT}, s{sT0}, v{vT}\nv_xor_b32 v{vT}, v{vT}, v1")
        a(f"v_lshl_add_u32 v{vYW}, v{vT}, 4, v{vYW}\nv_bfe_u32 v{vT}, v0, 4, 1\nv_lshl_add_u32 v{vYW}, v{vT}, 3, v{vYW}\nv_add_u32 v{vYW}, {YST}, v{vYW}\nv_xor_b32 v{vYW+1}, {128 + 7*16 + 8}, v{vYW}")
        a(f"v_lshrrev_b32 v1, 3, v0\nv_and_b32 v{vT}, 7, v0\nv_xor_b32 v{vT2}, v{vT}, v1\nv_lshlrev_b32 v{vYR}, 8, v1\nv_lshl_add_u32 v{vYR}, v{vT2}, 4, v{vYR}\ns_lshl_b32 s{sT0}, s{sWV}, 11\ns_add_u32 s{sT0}, s{sT0}, {YST}\nv_add_u32 v{vYR}, s{sT0}, v{vYR}")
        a(f"v_readfirstlane_b32 s{sT0}, v{vTT}\ns_and_b32 s{sT4}, s{sWV}, 1\ns_lshl_b32 s{sT4}, s{sT4}, 8\ns_add_u32 s{sT0}, s{sT0}, s{sT4}\nv_lshl_add_u32 v1, v1, 5, s{sT0}")
        a(f"v_sub_u32 v{vT2}, 2048, v1\ns_cmp_ge_u32 s{sWV}, 2\ns_cselect_b64 vcc, -1, 0\nv_cndmask_b32 v1, v1, v{vT2}, vcc\nv_mul_u32_u24 v1, 1792, v1")
        a(f"v_lshl_add_u32 v1, v{vT}, 4, v1\ns_lshl_b32 s{sT0}, s{sQ2}, 7\nv_add_u32 v{vD}, s{sT0}, v1\ns_sub_u32 s{sT0}, 770, s{sT0}\nv_add_u32 v{vM}, s{sT0}, v1")
    y_addr()
    u_phase()
    stamp(a, 'A', 'U here')
    lwait(a, C_WOR, vSM, vT)
    lwait(a, C_U, vSM, vT)
    AF = 168
    for bc in range(4):
        for ks in range(2):
            for sec in range(2):
                r = AF + 8*bc + 4*ks + 2*sec
                a(f"ds_read_b64_tr_b16 v[{r}:{r+1}], v{aU} offset:{bc*8192+ks*4096+sec*512}")
    PA, QA, ZA = 64, 68, 72
    lg = L("cls")
    a(f"s_cmp_lg_u32 s{sCL}, 0\ns_cbranch_scc1 {lg}g")
    a(f"s_waitcnt lgkmcnt(0)\ns_cmp_lt_u32 s{sTQ}, 2\ns_cbranch_scc1 {lg}h")
    mfma16(a, PA, AF, FR); mfma16(a, QA, AF+16, FI); mfma16(a, PA, AF+4, FR+4, PA); mfma16(a, QA, AF+20, FI+4, QA)
    a(f"s_branch {lg}x\n{lg}h:")
    mfma16(a, PA, AF+8, FR); mfma16(a, QA, AF+24, FI); mfma16(a, PA, AF+12, FR+4, PA); mfma16(a, QA, AF+28, FI+4, QA)
    a(f"s_branch {lg}x\n{lg}g:")
    a("s_waitcnt lgkmcnt(12)"); mfma16(a, PA, AF, FR); mfma16(a, PA, AF+4, FR+4, PA)
    a("s_waitcnt lgkmcnt(8)"); mfma16(a, PA, AF+8, NFI, PA); mfma16(a, PA, AF+12, NFI+4, PA)
    a("s_waitcnt lgkmcnt(4)"); mfma16(a, QA, AF+16, FI); mfma16(a, QA, AF+20, FI+4, QA)
    a("s_waitcnt lgkmcnt(0)"); mfma16(a, QA, AF+24, FR, QA); mfma16(a, QA, AF+28, FR+4, QA)
    a(f"{lg}x:\ns_nop 7")
    MM, PP = 76, 80
    for r in range(4): a(f"v_sub_f32 v{MM+r}, v{PA+r}, v{QA+r}\nv_add_f32 v{PP+r}, v{PA+r}, v{QA+r}")
    a(f"v_cvt_pk_bf16_f32 v84, v{MM}, v{MM+1}\nv_cvt_pk_bf16_f32 v85, v{MM+2}, v{MM+3}\nv_cvt_pk_bf16_f32 v86, v{PP}, v{PP+1}\nv_cvt_pk_bf16_f32 v87, v{PP+2}, v{PP+3}")
    a(f"v_cvt_pk_bf16_f32 v88, v{MM+3}, v{MM+2}\nv_cvt_pk_bf16_f32 v89, v{MM+1}, v{MM}\nv_cvt_pk_bf16_f32 v90, v{PP+3}, v{PP+2}\nv_cvt_pk_bf16_f32 v91, v{PP+1}, v{PP}")
    a(f"ds_write_b64 v{vYW}, v[84:85]\nds_write_b64 v{vYW}, v[86:87] offset:4096\nds_write_b64 v{vYW+1}, v[90:91]\nds_write_b64 v{vYW+1}, v[88:89] offset:4096")
    a("s_waitcnt lgkmcnt(0)"); signal(a, C_Y, vSM, vOne)
    lz = L("z")
    a(f"s_or_b32 s{sT0}, s{sCL}, s{sTQ}\ns_cmp_lg_u32 s{sT0}, 0\ns_cbranch_scc1 {lz}")
    for j in range(4): a(f"v_mov_b32 v{NFI+j}, 0x3f803f80")
    mfma16(a, ZA, AF, NFI); mfma16(a, ZA, AF+4, NFI, ZA)
    a(f"s_lshl_b32 s{sT1}, s{sQ2}, 6\ns_lshl_b32 s{sT2}, s{sWV}, 4\ns_add_u32 s{sT1}, s{sT1}, s{sT2}\nv_lshrrev_b32 v1, 4, v0\nv_lshl_add_u32 v{vE0}, v1, 2, s{sT1}")
    a(f"s_mov_b32 s14, 0x00010001\ns_mov_b32 s15, 0x00010001\ns_movk_i32 s{sT1}, 220\ns_movk_i32 s{sT2}, 224")
    a(f"v_cmp_ge_u32 s[8:9], s{sT1}, v{vE0}\nv_cmp_lt_u32 vcc, 0, v{vE0}\ns_and_b64 s[8:9], s[8:9], s[14:15]\ns_and_b64 s[10:11], s[8:9], vcc\nv_cmp_eq_u32 s[12:13], s{sT2}, v{vE0}\ns_and_b64 s[12:13], s[12:13], s[14:15]")
    a(f"v_lshlrev_b32 v56, 1, v{vE0}\nv_sub_u32 v57, {2*445}, v56")
    a(f"v_cvt_pk_bf16_f32 v92, v{ZA}, v{ZA+1}\nv_cvt_pk_bf16_f32 v93, v{ZA+2}, v{ZA+3}\nv_cvt_pk_bf16_f32 v94, v{ZA+3}, v{ZA}\nv_cvt_pk_bf16_f32 v95, v{ZA+2}, v{ZA+1}")
    a(f"s_mov_b64 exec, s[8:9]\nbuffer_store_dwordx2 v[92:93], v56, {srd(S_OUT)}, 0 offen {OF_}\nbuffer_store_short v94, v57, {srd(S_OUT)}, 0 offen {OF_}\nbuffer_store_dword v95, v57, {srd(S_OUT)}, 0 offen offset:2 {OF_}")
    a(f"s_mov_b64 exec, s[10:11]\nbuffer_store_short_d16_hi v94, v57, {srd(S_OUT)}, 0 offen offset:6 {OF_}")
    a(f"s_mov_b64 exec, s[12:13]\nbuffer_store_short v92, v56, {srd(S_OUT)}, 0 offen {OF_}\ns_mov_b64 exec, -1")
    a(f"{lz}:")
    lwait(a, C_Y, vSM, vT)
    a(f"ds_read_b128 v[84:87], v{vYR}\nds_read_b128 v[88:91], v{vYR} offset:128")
    ly = L("y")
    a(f"s_cmp_eq_u32 s{sQ2}, 3\ns_cbranch_scc1 {ly}3\ns_waitcnt lgkmcnt(1)\nbuffer_store_dwordx4 v[84:87], v{vD}, {srd(S_OUT)}, 0 offen {OF_}")
    a(f"s_waitcnt lgkmcnt(0)\ns_cmp_eq_u32 s{sQ2}, 0\ns_cbranch_scc1 {ly}0\nbuffer_store_dwordx4 v[88:91], v{vM}, {srd(S_OUT)}, 0 offen {OF_}\ns_branch {ly}x")
    a(f"{ly}0:\ns_mov_b32 exec_lo, 0x7f7f7f7f\ns_mov_b32 exec_hi, 0x7f7f7f7f\nbuffer_store_dwordx4 v[88:91], v{vM}, {srd(S_OUT)}, 0 offen {OF_}")
    a(f"s_mov_b32 exec_lo, 0x80808080\ns_mov_b32 exec_hi, 0x80808080\nbuffer_store_dwordx3 v[88:90], v{vM}, {srd(S_OUT)}, 0 offen {OF_}\nbuffer_store_short v91, v{vM}, {srd(S_OUT)}, 0 offen offset:12 {OF_}\ns_branch {ly}x")
    a(f"{ly}3:\ns_waitcnt lgkmcnt(0)\ns_mov_b32 exec_lo, 0x0f0f0f0f\ns_mov_b32 exec_hi, 0x0f0f0f0f\nbuffer_store_dwordx4 v[84:87], v{vD}, {srd(S_OUT)}, 0 offen {OF_}")
    a(f"s_mov_b32 exec_lo, 0x10101010\ns_mov_b32 exec_hi, 0x10101010\nbuffer_store_short v84, v{vD}, {srd(S_OUT)}, 0 offen {OF_}")
    a(f"s_mov_b32 exec_lo, 0xf0f0f0f0\ns_mov_b32 exec_hi, 0xf0f0f0f0\nbuffer_store_dwordx4 v[88:91], v{vM}, {srd(S_OUT)}, 0 offen {OF_}")
    a(f"{ly}x:\ns_mov_b64 exec, -1")
    stamp(a, 'A', 'A2 done')
    stamps_out(a, 'A')
    a("s_endpgm")

def softmax(a, P, E, T, PHp, PHm):
    idx = [0,1,2,3,4,5,6,8,9,10,11,12,13,14]
    prs = [0,2,4,8,10,12]
    if OPT['mimic']:
        for k in range(7): a(f"v_cvt_pk_bf16_f32 v{E+k}, v{P+idx[2*k]}, v{P+idx[2*k+1]}")
        for k in range(7): a(f"v_lshlrev_b32 v{P+idx[2*k]}, 16, v{E+k}\nv_and_b32 v{P+idx[2*k+1]}, s{sMASK}, v{E+k}")
    mx, mn, t1, t2 = T, T+2, T+1, T+3
    a(f"v_max3_f32 v{mx}, v{P+idx[0]}, v{P+idx[1]}, v{P+idx[2]}\nv_min3_f32 v{mn}, v{P+idx[0]}, v{P+idx[1]}, v{P+idx[2]}")
    for k in range(3, 13, 2):
        a(f"v_max3_f32 v{mx}, v{mx}, v{P+idx[k]}, v{P+idx[k+1]}\nv_min3_f32 v{mn}, v{mn}, v{P+idx[k]}, v{P+idx[k+1]}")
    a(f"v_max_f32 v{mx}, v{mx}, v{P+idx[13]}\nv_min_f32 v{mn}, v{mn}, v{P+idx[13]}")
    a(f"v_mov_b32 v{t1}, v{mx}\nv_mov_b32 v{t2}, v{mn}")
    a(f"v_permlane32_swap_b32 v{mx}, v{t1}\nv_permlane32_swap_b32 v{mn}, v{t2}")
    a(f"v_max_f32 v{mx}, v{mx}, v{t1}\nv_min_f32 v{mn}, v{mn}, v{t2}")
    a(f"v_mul_f32 v{mx}, s{sNL}, v{mx}\nv_mul_f32 v{mn}, s{sL}, v{mn}")
    for i in prs:
        a(f"v_pk_fma_f32 v[{E+i}:{E+i+1}], v[{P+i}:{P+i+1}], s[{sL}:{sL+1}], v[{mx}:{mx+1}] op_sel_hi:[1,0,0]")
        a(f"v_pk_fma_f32 v[{P+i}:{P+i+1}], v[{P+i}:{P+i+1}], s[{sL}:{sL+1}], v[{mn}:{mn+1}] op_sel:[0,1,0] op_sel_hi:[1,1,0]")
    for i in (6, 14): a(f"v_fma_f32 v{E+i}, v{P+i}, s{sL}, v{mx}\nv_fma_f32 v{P+i}, v{P+i}, s{sNL}, v{mn}")
    for i in idx: a(f"v_exp_f32 v{E+i}, v{E+i}\nv_exp_f32 v{P+i}, v{P+i}")
    sp, sm = T+4, T+6
    a(f"v_pk_add_f32 v[{sp}:{sp+1}], v[{E}:{E+1}], v[{E+2}:{E+3}]\nv_pk_add_f32 v[{sm}:{sm+1}], v[{P}:{P+1}], v[{P+2}:{P+3}]")
    for i in prs[2:]: a(f"v_pk_add_f32 v[{sp}:{sp+1}], v[{sp}:{sp+1}], v[{E+i}:{E+i+1}]\nv_pk_add_f32 v[{sm}:{sm+1}], v[{sm}:{sm+1}], v[{P+i}:{P+i+1}]")
    a(f"v_add_f32 v{sp}, v{sp}, v{E+6}\nv_add_f32 v{sm}, v{sm}, v{P+6}\nv_add_f32 v{sp+1}, v{sp+1}, v{E+14}\nv_add_f32 v{sm+1}, v{sm+1}, v{P+14}")
    a(f"v_add_f32 v{sp}, v{sp}, v{sp+1}\nv_add_f32 v{sm}, v{sm}, v{sm+1}")
    a(f"v_mov_b32 v{t1}, v{sp}\nv_mov_b32 v{t2}, v{sm}")
    a(f"v_permlane32_swap_b32 v{sp}, v{t1}\nv_permlane32_swap_b32 v{sm}, v{t2}")
    a(f"v_add_f32 v{sp}, v{sp}, v{t1}\nv_add_f32 v{sm}, v{sm}, v{t2}")
    a(f"v_rcp_f32 v{sp}, v{sp}\nv_rcp_f32 v{sm}, v{sm}")
    for i in prs:
        a(f"v_pk_mul_f32 v[{E+i}:{E+i+1}], v[{E+i}:{E+i+1}], v[{sp}:{sp+1}] op_sel_hi:[1,0]")
        a(f"v_pk_mul_f32 v[{P+i}:{P+i+1}], v[{P+i}:{P+i+1}], v[{sm}:{sm+1}] op_sel_hi:[1,0]")
    for i in (6, 14): a(f"v_mul_f32 v{E+i}, v{E+i}, v{sp}\nv_mul_f32 v{P+i}, v{P+i}, v{sm}")
    for k in range(8):
        hi_e = f"v{E+2*k+1}" if (2*k+1) not in (7, 15) else "0"
        hi_p = f"v{P+2*k+1}" if (2*k+1) not in (7, 15) else "0"
        a(f"v_cvt_pk_bf16_f32 v{PHp+k}, v{E+2*k}, {hi_e}\nv_cvt_pk_bf16_f32 v{PHm+k}, v{P+2*k}, {hi_p}")

sPS, sPL, sOS, sOL, sOUT, sMS, sCG, sGO, sH1S, sH1, sH2S, sH2 = 92, 93, 94, 95, 96, 97, 3, 98, 99, 100, 101, 60
def SCALARS(a):
    a(f"s_lshl_b32 s{sPS}, s{sH}, 4\ns_add_u32 s{sPS}, s{sPS}, s{sRB}\ns_lshl_b32 s{sPS}, s{sPS}, 2\ns_add_u32 s{sPS}, s{sPS}, s{sWV}\ns_lshl_b32 s{sPS}, s{sPS}, 10\ns_add_u32 s{sPS}, s{sPS}, {W_KVP}")
    a(f"s_lshl_b32 s{sOS}, s{sRB}, 2\ns_add_u32 s{sOS}, s{sOS}, s{sWV}\ns_lshl_b32 s{sOS}, s{sOS}, 4\ns_add_u32 s{sOS}, s{sOS}, s{sH}")

    a(f"s_lshl_b32 s{sOS}, s{sOS}, 11\ns_add_u32 s{sOS}, s{sOS}, {W_O}")
    a(f"s_lshl_b32 s{sPL}, s{sH}, 16\ns_lshl_b32 s{sT0}, s{sWV}, 10\ns_add_u32 s{sPL}, s{sPL}, s{sT0}\ns_add_u32 s{sPL}, s{sPL}, {W_KVP}")
    a(f"s_lshl_b32 s{sT1}, s{sXCD}, 2\ns_lshr_b32 s{sT0}, s{sI}, 3\ns_add_u32 s{sT1}, s{sT1}, s{sT0}")
    a(f"s_lshl_b32 s{sOL}, s{sT1}, 2\ns_add_u32 s{sOL}, s{sOL}, s{sWV}\ns_lshl_b32 s{sOL}, s{sOL}, 14\ns_add_u32 s{sOL}, s{sOL}, {W_O}")
    a(f"s_lshl_b32 s{sT1}, s{sT1}, 1\ns_lshr_b32 s{sT0}, s{sWV}, 1\ns_add_u32 s{sT1}, s{sT1}, s{sT0}\ns_mul_i32 s{sOUT}, s{sT1}, {32*1792}")
    a(f"s_and_b32 s{sCG}, s{sI}, 7\ns_lshl_b32 s{sT1}, s{sCG}, 1\ns_and_b32 s{sT0}, s{sWV}, 1\ns_add_u32 s{sT1}, s{sT1}, s{sT0}\ns_lshl_b32 s{sT1}, s{sT1}, 6\ns_add_u32 s{sOUT}, s{sOUT}, s{sT1}\ns_add_u32 s{sOUT}, s{sOUT}, 896")

def gen_B(a):
    a("LB:")
    if not OPT.get('epf', 0):
        a(f"s_getpc_b64 s[4:5]")
        l = L("pc"); a(f"{l}:")
        a(f"s_sub_u32 s4, s4, {l}-{NAME}_kernel\ns_subb_u32 s5, s5, 0")
        a(f"s_lshl_b32 s{sT0}, s{sWV}, 13\nv_lshl_add_u32 v1, v0, 7, s{sT0}\nv_min_u32 v1, LTAB-{NAME}_kernel+{T_END}-4, v1")
        a(f"global_load_dword v252, v1, s[4:5]")
    a(f"v_lshlrev_b32 v9, 4, v0\ns_and_b32 s{sT0}, s{sWV}, 1\ns_lshl_b32 s{sT0}, s{sT0}, 10\ns_add_u32 m0, s{sT0}, {PHI}\ns_mul_i32 s{sT1}, s{sH}, 1568\ns_add_u32 s{sT1}, s{sT1}, s{sT0}")
    a("s_waitcnt lgkmcnt(0)")
    mk_srd(a, S_PHI, 22, 16*1568)
    a(f"buffer_load_dwordx4 v9, {srd(S_PHI)}, s{sT1} offen lds")
    if OPT.get('tlb', 0):
        a(f"s_cmp_eq_u32 s{sWV}, 1\ns_cselect_b32 s4, s26, s30\ns_cselect_b32 s5, s27, s31\ns_cmp_eq_u32 s{sWV}, 2\ns_cselect_b32 s4, s8, s4\ns_cselect_b32 s5, s9, s5\ns_cmp_eq_u32 s{sWV}, 3\ns_cselect_b32 s4, s24, s4\ns_cselect_b32 s5, s25, s5")
        a(f"s_lshr_b32 s{sT0}, 3, s{sWV}\nv_min_u32 v1, s{sT0}, v0\nv_mul_u32_u24 v1, 0x200c00, v1\nv_and_b32 v1, 0xfffff000, v1\nv_add_u32 v1, 0x800, v1")
        a(f"global_load_dword v111, v1, s[4:5]")
    if OPT['stamps']:
        a(f"v_mov_b32 v{STV}, 0\nv_writelane_b32 v{STV}, s{ST0+2}, 0"); nst['B'] = 1
    vL16, vSM, vOne, vT, vT2, vNon = 9, 10, 11, 12, 13, 14
    aX0, aW0 = 2, 6
    AK, AV, WF, PHIF, X = 16, 32, 48, 80, 128
    ASEL, WOR, DM = 96, 100, 104
    vTag, vZ, vAcc = 107, 108, 109
    a(f"v_mov_b32 v{vZ}, 0")
    a(f"s_mov_b32 s{sL}, 0x3fb8aa3b\ns_mov_b32 s{sNL}, 0xbfb8aa3b\ns_mov_b32 s{sMASK}, 0xffff0000\ns_mov_b32 s{sLO}, 0xffff")
    vR, vHH = 7, 8
    a(f"v_and_b32 v{vR}, 31, v0\nv_lshrrev_b32 v{vHH}, 5, v0\nv_bfe_u32 v{vT}, v0, 1, 3")
    a(f"s_lshl_b32 s{sT0}, s{sWV}, 12\ns_add_u32 s{sT0}, s{sT0}, {XR0}")
    a(f"v_xor_b32 v{vT2}, v{vT}, v{vHH}\nv_lshlrev_b32 v{vT2}, 4, v{vT2}\nv_lshl_add_u32 v{vT2}, v{vR}, 7, v{vT2}\nv_add_u32 v{vT2}, s{sT0}, v{vT2}")
    for ks in range(4): a(f"v_xor_b32 v{aX0+ks}, {32*ks}, v{vT2}")
    aKW, aKA, aKB = 112, 116, 118
    a(f"s_lshl_b32 s{sT0}, s{sWV}, 12\ns_add_u32 s{sT0}, s{sT0}, {KVX}")
    a(f"v_xor_b32 v{vT2}, v{vT}, v{vHH}\nv_lshlrev_b32 v{vT2}, 3, v{vT2}\nv_lshl_add_u32 v{vT2}, v{vR}, 6, v{vT2}\nv_add_u32 v{vT2}, s{sT0}, v{vT2}")
    for k in range(4): a(f"v_xor_b32 v{aKW+k}, {16*k}, v{vT2}")
    vG, vR4, vCC = 122, 123, 124
    a(f"v_lshrrev_b32 v{vG}, 4, v0\nv_bfe_u32 v{vR4}, v0, 2, 2\nv_and_b32 v{vCC}, 3, v0")
    a(f"v_lshl_add_u32 v{vT2}, v{vHH}, 3, v{vR4}\nv_lshlrev_b32 v{vT2}, 6, v{vT2}\nv_lshl_add_u32 v{vT2}, v{vCC}, 3, v{vT2}\nv_and_b32 v{vT}, 1, v{vG}\nv_lshl_add_u32 v{aW0}, v{vT}, 5, v{vT2}")
    a(f"v_lshlrev_b32 v{vT}, 2, v{vT}\nv_lshrrev_b32 v{vT2}, 1, v{vR4}\nv_add_u32 v{vT}, v{vT}, v{vT2}\nv_xor_b32 v{vT}, v{vT}, v{vCC}\nv_lshlrev_b32 v{vT}, 3, v{vT}")
    a(f"v_lshl_add_u32 v{vT2}, v{vG}, 3, v{vR4}\nv_lshl_add_u32 v{vT}, v{vT2}, 6, v{vT}")
    a(f"v_add_u32 v{aKB}, {KVX+16384}, v{vT}\nv_add_u32 v{aKB+1}, 256, v{aKB}\nv_xor_b32 v{aKB+1}, 16, v{aKB+1}\nv_xor_b32 v{aKB+2}, 32, v{aKB}\nv_xor_b32 v{aKB+3}, 32, v{aKB+1}")
    a(f"s_and_b32 s{sT0}, s{sWV}, 1\ns_lshl_b32 s{sT0}, s{sT0}, 5\ns_lshr_b32 s{sT1}, s{sWV}, 1\ns_lshl_b32 s{sT1}, s{sT1}, 11\ns_sub_u32 s{sT1}, 16384, s{sT1}")
    for sec in range(2): a(f"v_xor_b32 v{aKA+sec}, s{sT0}, v{aKB+sec}\nv_subrev_u32 v{aKA+sec}, s{sT1}, v{aKA+sec}")
    vPS, vPL, vKFW, vKFR = 125, 126, 127, 105
    a(f"v_and_b32 v{vT}, 15, v0\nv_lshlrev_b32 v{vT}, 4, v{vT}\nv_and_b32 v{vT2}, 1, v{vG}\nv_lshl_add_u32 v{vT}, v{vT2}, 9, v{vT}")
    a(f"v_lshl_add_u32 v{vPS}, v{vHH}, 8, v{vT}\nv_lshl_add_u32 v{vPL}, v{vHH}, 12, v{vT}\nv_lshl_add_u32 v{vKFW}, v{vHH}, 3, v{vT}")
    a(f"s_lshl_b32 s{sT0}, s{sWV}, 10\ns_add_u32 s{sT0}, s{sT0}, {KVF}\nv_add_u32 v{vKFW}, s{sT0}, v{vKFW}")
    mk_srd(a, S_WS, 30, 0x10000000); mk_srd(a, S_OUT, 26, 2048*1792)
    SCALARS(a)
    def xread(c):
        for ks in range(4):
            a(f"ds_read_b128 v[{X+16*c+4*ks}:{X+16*c+4*ks+3}], v{aX0+ks} offset:{(c % 4)*SLOT}")
    a(f"v_lshrrev_b32 v{vT}, 4, v{vR}\nv_and_b32 v{vT2}, 15, v0\nv_add_u32 v{vT2}, 4, v{vT2}\nv_lshrrev_b32 v{vT2}, 4, v{vT2}\nv_lshl_add_u32 v{vT2}, v{vT}, 1, v{vT2}\nv_sub_u32 v{DM}, v{vR}, v{vT2}")
    a(f"v_and_b32 v{vT2}, 11, v0\nv_add_u32 v{vT}, 28, v{vT}\nv_cmp_eq_u32 vcc, 11, v{vT2}\nv_cndmask_b32 v{DM}, v{DM}, v{vT}, vcc")
    a(f"v_lshl_add_u32 v{WOR}, v{vHH}, 2, v{vR4}\nv_sub_u32 v{vT}, v{WOR}, v{vHH}\nv_add_u32 v{WOR+1}, 8, v{vT}\nv_add_u32 v{WOR+2}, 14, v{WOR}\nv_add_u32 v{WOR+3}, 22, v{vT}\nv_min_u32 v{WOR+3}, 27, v{WOR+3}")
    a(f"v_lshlrev_b32 v{vKFR}, 4, v{DM}\nv_lshl_add_u32 v{vKFR}, v{vHH}, 9, v{vKFR}\nv_add_u32 v{vKFR}, {KVF}, v{vKFR}")
    a(f"v_and_b32 v{vT2}, 1, v{vG}\nv_lshlrev_b32 v{vT2}, 5, v{vT2}\nv_lshl_add_u32 v{vT2}, v{vCC}, 3, v{vT2}")
    a(f"s_and_b32 s{sT0}, s{sWV}, 1\nv_add_u32 v{vT2}, {WOA}, v{vT2}")
    for k in range(4):
        a(f"v_bfe_u32 v{vT}, v{WOR+k}, 1, 1\nv_xor_b32 v{vT}, s{sT0}, v{vT}\nv_lshl_add_u32 v{vT}, v{vT}, 6, v{vT2}\nv_lshl_add_u32 v{WOR+k}, v{WOR+k}, 7, v{vT}")
    aPH = 106
    a(f"v_min_u32 v{vT}, 27, v{DM}\nv_mul_u32_u24 v{vT2}, 224, v{vHH}\nv_lshl_add_u32 v{aPH}, v{vT}, 1, v{vT2}\nv_add_u32 v{aPH}, {PHI}, v{aPH}")
    AT = 88
    a(f"s_waitcnt vmcnt(0)")
    if OPT['prio']: a(f"s_setprio {OPT['prio']}")
    if OPT['lst']: stamp(a, 'B', 'setup')
    lq = []
    def lwait_tag(tag):
        if tag not in lq: return
        idx = max(i for i, t in enumerate(lq) if t == tag)
        a(f"s_waitcnt lgkmcnt({min(15, len(lq)-1-idx)})")
        del lq[:idx+1]
    for c in range(7):
        a("s_barrier")
        for ks in range(4):
            a(f"ds_read_b128 v[{X+16*c+4*ks}:{X+16*c+4*ks+3}], v{aX0+ks} offset:{(c % 4)*SLOT}")
            for sg in range(2):
                for sec in range(2):
                    r = WF + 8*ks + 4*sg + 2*sec
                    a(f"ds_read_b64_tr_b16 v[{r}:{r+1}], v{aW0} offset:{WKV + c*8192 + sg*4096 + ks*1024 + sec*256}")
            lq.extend([f"k{ks}"]*5)
        if c == 6: a(f"ds_read_b32 v{vNon}, v{vSM} offset:{NONCE}"); lq.append("non")
        for ks in range(4):
            n = 4*c + ks
            lwait_tag(f"k{ks}")
            if n == 27: signal(a, C_G, vSM, vOne)
            mfma32(a, AK, WF+8*ks, X+4*n, AK if n else None)
            mfma32(a, AV, WF+8*ks+4, X+4*n, AV if n else None)
        if c == 0:
            for i in range(2):
                for jj in range(8):
                    a(f"ds_read_u16 v{240+8*i+jj}, v{aPH} offset:{(16*i + (jj & 3) + 8*(jj >> 2))*56}")
            a("s_waitcnt lgkmcnt(0)")
            for k in range(8): a(f"v_lshl_or_b32 v{PHIF+k}, v{241+2*k}, 16, v{240+2*k}")
            a(f"s_mov_b32 exec_lo, 0\nv_mov_b32 v{PHIF+6}, 0\nv_mov_b32 v{PHIF+7}, 0\ns_mov_b32 exec_lo, -1")
    a(f"s_waitcnt lgkmcnt(1)\ns_mov_b32 s{sT0}, 0x9e3779b1\nv_mul_lo_u32 v{vT}, v{vNon}, s{sT0}\nv_cmp_lt_u32 vcc, 1, v{vCC}\nv_and_b32 v{vT2}, 1, v0\nv_lshlrev_b32 v{vT2}, 4, v{vT2}\nv_cndmask_b32 v{vT}, v{vNon}, v{vT}, vcc")
    a(f"v_xor_b32 v{vT2}, 16, v{vT2}\nv_lshlrev_b32 v{vT}, v{vT2}, v{vT}\nv_and_b32 v{vTag}, 0xbfff0000, v{vT}")
    stamp(a, 'B', 'gemm')
    if OPT.get('trunc'):
        stamps_out(a, 'B'); return
    KB = 48; VB = 56; E = 64; T = 88
    for j in range(8): a(f"v_cvt_pk_bf16_f32 v{KB+j}, v{AK+2*j}, v{AK+2*j+1}")
    mfma32(a, AK, PHIF, KB, None); mfma32(a, AK, PHIF+4, KB+4, AK)
    for j in range(8): a(f"v_cvt_pk_bf16_f32 v{VB+j}, v{AV+2*j}, v{AV+2*j+1}")
    a(f"s_mov_b32 exec_lo, 0\nv_mov_b32 v{VB+6}, 0x3f80\nv_mov_b32 v{VB+7}, 0\ns_mov_b32 exec_lo, -1")
    for k in range(4): a(f"ds_write_b64 v{aKW+k}, v[{VB+2*k}:{VB+2*k+1}] offset:16384")
    softmax(a, AK, E, T, 32, 40)
    for k in range(4):
        a(f"ds_write_b64 v{aKW+k}, v[{32+2*k}:{33+2*k}]\nds_write_b64 v{aKW+k}, v[{40+2*k}:{41+2*k}] offset:2048")
    a("s_waitcnt lgkmcnt(0)"); signal(a, C_B1, vSM, vOne)
    lwait(a, C_B1, vSM, vT)
    stamp(a, 'B', 'phik sync')
    FA, FB = 32, 48
    for ks in range(4):
        for sec in range(2): a(f"ds_read_b64_tr_b16 v[{FA+4*ks+2*sec}:{FA+4*ks+2*sec+1}], v{aKA+sec} offset:{4096*ks}")
        for dt in range(2):
            for sec in range(2):
                r = FB + 16*dt + 4*ks + 2*sec
                a(f"ds_read_b64_tr_b16 v[{r}:{r+1}], v{aKB+2*dt+sec} offset:{4096*ks}")
        if ks >= 2:
            k2 = ks - 2
            a(f"s_waitcnt lgkmcnt(12)")
            for dt in range(2): mfma16(a, 16+4*dt, FA+4*k2, FB+16*dt+4*k2, 16+4*dt if k2 else None)
    for k2 in (2, 3):
        a(f"s_waitcnt lgkmcnt({6*(3-k2)})")
        for dt in range(2): mfma16(a, 16+4*dt, FA+4*k2, FB+16*dt+4*k2, 16+4*dt)
    a(f"ds_read_b32 v{vT2}, v{vSM} offset:{C_WQ}")
    a(f"v_add_u32 v{AT}, {WQ}, v{aW0}")
    a(f"v_cvt_pk_bf16_f32 v24, v16, v17\nv_cvt_pk_bf16_f32 v25, v18, v19\nv_cvt_pk_bf16_f32 v26, v20, v21\nv_cvt_pk_bf16_f32 v27, v22, v23")
    a("v_permlane32_swap_b32 v24, v26\nv_permlane32_swap_b32 v25, v27")
    a(f"v_bfi_b32 v27, s{sLO}, v27, v{vTag}")
    a(f"buffer_store_dwordx4 v[24:27], v{vPS}, {srd(S_WS)}, s{sPS} offen sc1")
    stamp(a, 'B', 'partial out')
    lq = L("wq")
    a(f"s_waitcnt lgkmcnt(0)\nv_readfirstlane_b32 s{sT0}, v{vT2}\ns_cmp_ge_u32 s{sT0}, 4\ns_cbranch_scc1 {lq}")
    lwait(a, C_WQ, vSM, vT2)
    a(f"{lq}:")
    AQ = 32
    NB = 6
    def wq_read(n):
        r = WF + 4*(n % 8)
        for sec in range(2): a(f"ds_read_b64_tr_b16 v[{r+2*sec}:{r+2*sec+1}], v{AT} offset:{n*1024+sec*256}")
    vH, vHA = 110, 111
    for n in range(NB): wq_read(n)
    for n in range(28):
        a(f"s_waitcnt lgkmcnt({2*min(NB-1, 27-n)})")
        mfma32(a, AQ, WF+4*(n % 8), X+4*n, AQ if n else None)
        if n + NB < 28: wq_read(n + NB)
        if n == OPT.get('qh', 27): signal(a, C_QH, vSM, vOne)
    PHQp = 112; PHQm = 80
    for j in range(8): a(f"v_cvt_pk_bf16_f32 v{KB+j}, v{AQ+2*j}, v{AQ+2*j+1}")
    mfma32(a, AK, PHIF, KB, None); mfma32(a, AK, PHIF+4, KB+4, AK)
    stamp(a, 'B', 'q gemm')
    softmax(a, AK, E, T, PHQp, PHQm)
    stamp(a, 'B', 'phiq')
    lwait(a, C_B2, vSM, vT)
    stamp(a, 'B', 'kv sync')
    for p in range(4): a(f"ds_read_b128 v[{48+4*p}:{51+4*p}], v{vKFR} offset:{1024*p}")
    N = 16
    for p in range(4):
        a(f"s_waitcnt lgkmcnt({3-p})")
        mfma32(a, N, 48+4*p, (PHQp if p < 2 else PHQm) + 4*(p & 1), N if p else None)
    a(f"ds_read_b32 v{vT2}, v{vSM} offset:{C_WO}")
    a(f"v_add_f32 v{T}, 0x358637bd, v{N+7}\nv_rcp_f32 v{T}, v{T}")
    for i in [0,2,4,8,10,12]: a(f"v_pk_mul_f32 v[{N+i}:{N+i+1}], v[{N+i}:{N+i+1}], v[{T}:{T+1}] op_sel_hi:[1,0]")
    for i in (6, 14): a(f"v_mul_f32 v{N+i}, v{N+i}, v{T}")
    for k in range(8):
        hi = f"v{N+2*k+1}" if (2*k+1) not in (7, 15) else "0"
        a(f"v_cvt_pk_bf16_f32 v{32+k}, v{N+2*k}, {hi}")
        if k in (3, 7):
            a(f"v_or_b32 v{32+k}, v{32+k}, v{vTag}")
            a(f"buffer_store_dwordx4 v[{29+k}:{32+k}], v{vL16}, {srd(S_WS)}, s{sOS} offen offset:{1024*(k>>2)} sc1")
    stamp(a, 'B', 'o out')
    lx = L("idle")
    a(f"s_cmp_lg_u32 s{sCG}, 7\ns_cbranch_scc1 {lx}")
    a(f"s_sleep {OPT.get('be', 24) + 30}")
    signal(a, C_O, vSM, vOne); signal(a, C_WOR, vSM, vOne); signal(a, C_B3, vSM, vOne)
    a(f"s_branch LBX\n{lx}:")
    WOF = 128; OL = 16
    def wo_reads(hs, delta):
        for h2 in hs:
            off = wobase(h2) - delta
            assert 0 <= off < 65536
            for i in range(2):
                for sec in range(2):
                    r = WOF + 8*h2 + 4*i + 2*sec
                    a(f"ds_read_b64_tr_b16 v[{r}:{r+1}], v{WOR+2*i+sec} offset:{off}")
    lq = L("wo")
    a(f"s_waitcnt lgkmcnt(0)\nv_readfirstlane_b32 s{sT0}, v{vT2}\ns_cmp_ge_u32 s{sT0}, 4\ns_cbranch_scc1 {lq}")
    lwait(a, C_WO, vSM, vT)
    a(f"{lq}:")
    G2 = Gather(a, 8, 2, lambda p: OL + 8*p, lambda p: o_issue(p), lambda p: o_consume(p), vH, vHA, None, vNon, vAcc, vTag, sLO, sMS, sGO, 22)
    wo_reads(range(8), WOA)
    for k in range(4): a(f"v_add_u32 v{WOR+k}, {WOB-WOA}, v{WOR+k}")
    wo_reads(range(8, 16), WOB)
    vO, vOW, vOX, vOR, vORX = 88, 89, 90, 91, 92
    a(f"v_mul_u32_u24 v{vO}, 1792, v{vR}\nv_lshl_add_u32 v{vO}, v{vHH}, 4, v{vO}")
    a(f"s_cmp_lt_u32 s{sWV}, 2\ns_cselect_b32 s{sT1}, {OB0}, {OB1}\ns_cselect_b32 s{sT2}, 0, {OB1X - 28*1024 - OB1}")
    a(f"v_add_u32 v{vOR}, s{sT1}, v{vL16}\nv_add_u32 v{vORX}, s{sT2}, v{vOR}")
    a(f"s_and_b32 s{sT0}, s{sWV}, 1\ns_lshl_b32 s{sT1}, s{sT0}, 14\ns_mul_i32 s{sT2}, s{sT2}, s{sT0}\nv_add_u32 v{vOW}, s{sT1}, v{vOR}\nv_add_u32 v{vOX}, s{sT2}, v{vOW}")
    a("s_waitcnt lgkmcnt(0)"); signal(a, C_WOR, vSM, vOne)
    stamp(a, 'B', 'wo frags')
    def o_issue(p):
        if not p & 1: a(f"s_add_u32 s{sT4}, s{sOL}, {2048*p}")
        else: a(f"s_add_u32 s{sT4}, s{sOL}, {2048*(p-1)}")
        for k in range(2):
            r = OL + 8*p + 4*k
            a(f"buffer_load_dwordx4 v[{r}:{r+3}], v{vL16}, {srd(S_WS)}, s{sT4} offen offset:{2048*(p&1)+1024*k} sc1")
    def o_consume(p):
        for k in range(2):
            r = OL + 8*p + 4*k
            a(f"v_and_b32 v{r+3}, s{sLO}, v{r+3}\nds_write_b128 v{vOX if p >= 6 else vOW}, v[{r}:{r+3}] offset:{2048*p+1024*k}")
    def backoff(early, late):
        lb = L("bo")
        a(f"s_lshr_b32 s{sT0}, 0xaa54, s{sH}\ns_bitcmp1_b32 s{sT0}, 0\ns_cbranch_scc1 {lb}")
        if early > late: a(f"s_sleep {early - late}")
        a(f"{lb}:")
        if late: a(f"s_sleep {late}")
    backoff(OPT.get('be1', 8), 0)
    l2 = L("h2")
    a(f"s_bitcmp1_b32 s{sWV}, 0\ns_cbranch_scc1 {l2}o")
    for par in range(2):
        late = [p for p in range(8) if (0xaa54 >> (8*par + p)) & 1 or OPT.get('one', 1)]
        order = [p for p in range(8) if p not in late] + late
        for n_, p in enumerate(order):
            if n_ == 8 - len(late):
                if par == 0: stamp(a, 'B', 'o asked 1')
                backoff(OPT.get('be', 24), OPT.get('bl', 0))
            o_issue(p)
        signal(a, C_O, vSM, vOne)
        if par == 0: stamp(a, 'B', 'o asked 2')
        for n_, p in enumerate(order):
            r = OL + 8*p
            a(f"s_waitcnt vmcnt({2*(7-n_)})")
            if n_ == 0: a(f"v_bitop3_b32 v{vAcc}, v{r+3}, v{r+7}, v{vTag} bitop3:0x7e")
            else: a(f"v_bitop3_b32 v{vAcc}, v{vAcc}, v{r+3}, v{vTag} bitop3:0xf6\nv_bitop3_b32 v{vAcc}, v{vAcc}, v{r+7}, v{vTag} bitop3:0xf6")
            for k in range(2):
                rr = r + 4*k
                a(f"v_xor_b32 v{rr+3}, v{vTag}, v{rr+3}\nds_write_b128 v{vOX if p >= 6 else vOW}, v[{rr}:{rr+3}] offset:{2048*p+1024*k}")
        if par == 0: a(f"s_branch {l2}j\n{l2}o:")
    a(f"{l2}j:\nv_cmp_lt_u32 vcc, s{sLO}, v{vAcc}\ns_cbranch_vccz {l2}x")
    a("s_waitcnt lgkmcnt(0)")
    for q_ in range(16): a(f"v_xor_b32 v{OL+4*q_+3}, v{vTag}, v{OL+4*q_+3}")
    a(f"s_mov_b32 s{sMS}, 0xff\ns_mov_b32 s{sGO}, 0xff")
    G2.take(l2 + "u", False)
    G2.l = l2
    G2.retry()
    a("s_waitcnt lgkmcnt(0)"); signal(a, C_B3, vSM, vOne)
    lwait(a, C_B3, vSM, vT)
    stamp(a, 'B', 'o sync')
    OF = 48; NR = 8
    def o_read(n): a(f"ds_read_b128 v[{OF+4*(n%NR)}:{OF+4*(n%NR)+3}], v{vORX if n >= 28 else vOR} offset:{1024*n}")
    for n in range(NR): o_read(n)
    for n in range(32):
        a(f"s_waitcnt lgkmcnt({min(NR-1, 31-n)})")
        mfma32(a, 16, WOF+4*n, OF+4*(n % NR), 16 if n else None)
        if n + NR < 32: o_read(n + NR)
    for j in range(8): a(f"v_cvt_pk_bf16_f32 v{32+j}, v{16+2*j}, v{17+2*j}")
    a("v_permlane32_swap_b32 v32, v34\nv_permlane32_swap_b32 v33, v35\nv_permlane32_swap_b32 v36, v38\nv_permlane32_swap_b32 v37, v39")
    a(f"buffer_store_dwordx4 v[32:35], v{vO}, {srd(S_OUT)}, s{sOUT} offen {OF_}")
    a(f"buffer_store_dwordx4 v[36:39], v{vO}, {srd(S_OUT)}, s{sOUT} offen offset:32 {OF_}")
    a("LBX:")
    stamp(a, 'B', 'end')
    stamps_out(a, 'B')

a = Asm()
prologue(a)
gen_A(a)
gen_B(a)
a("LEND:\ns_endpgm")
text = hz.fix(a.text())
tab, tn = tables()
text += "\n.p2align 8\nLTAB:\n" + tab + "\n"
src = make_file([(NAME+"_kernel", 256, 512, LDS_BYTES)], {NAME+"_kernel": (text, 256, 102, 256)}, single=True)
open(sys.argv[1], "w").write(src)
if OPT['stamps']:
    open(sys.argv[1] + ".names", "w").write("\n".join(names['B'] + ['']*(NSTAMP-len(names['B'])) + names['A'] + ['']*(NSTAMP-len(names['A']))))
print("stamps B", nst['B'], "A", nst['A'], "table bytes", tn, "src bytes", len(src))
```

```python
import sys, math, struct
from asmlib import *
import hz

OPT = dict(stamps=0, mimic=1, hpx=4, rot=1, prio=2, clk=0, ahead=3, lst=0, seq=3, wolate=0)
for x in sys.argv[2:]:
    k, v = x.split('='); OPT[k] = int(v) if v.lstrip('-').isdigit() else v

WKV = 0
WQ = 0
XR0 = 57344
SLOT = 16384
KVX = XR0
XP = 122880
STG = XP
UT = XP
SM = 155648
C_B1, C_B2, C_B3, C_WOR, C_WQ, C_WO, C_QG, C_U, C_G, C_A1E, C_P, NONCE, C_XP, C_A1D, C_O, C_Y, C_UA, C_QH, C_PL = [4*i for i in range(19)]
YST = 32768
PHI = SM + 256
KVF = SM + 4096
OB = 0
WOA, WOB = 28672, XR0 + 2*SLOT
def wobase(h): return WOA + 3584*h if h < 8 else WOB + 3584*(h-8)
OB0, OB1, OB1X = XR0, 0, WOB + 28672
LDS_BYTES = 163840
W_KVP = 0x1000; W_O = 0x201000; W_U = 0x402000; W_FL = 0x180000
W_FU = W_FL; W_F1 = W_FL + 0x10000; W_F2 = W_FL + 0x30000
W_ST = 0x700000
W_WP = 0x700000
S_BX, S_W, S_AX, S_WO, S_WS, S_OUT, S_PHI, S_FR, S_FI, S_DBG = [32 + 4*i for i in range(10)]
sXCD, sI, sH, sRB, sWV, sROT, sBUD, sNON = 72, 73, 74, 75, 76, 77, 78, 79
sT0, sT1, sT2, sT3, sT4, sT5 = 80, 81, 82, 83, 84, 85
sL, sNL, sMASK, sLO = 86, 87, 88, 89
sTAB = 6
ST0 = 90
OF_ = OPT.get('of', '')
def srd(s): return f"s[{s}:{s+3}]"

class VM:
    def __init__(self, a): self.a = a; self.q = []
    def issue(self, tag, n=1): self.q += [tag]*n
    def wait(self, tag):
        if tag not in self.q: return
        idx = max(i for i, t in enumerate(self.q) if t == tag)
        n = len(self.q) - 1 - idx
        assert n <= 63
        self.a(f"s_waitcnt vmcnt({n})")
        self.q = self.q[idx+1:]
    def drain(self):
        self.a("s_waitcnt vmcnt(0)"); self.q = []

lab = [0]
def L(p):
    lab[0] += 1
    return f"L{p}_{lab[0]}"

nst = {'B': 0, 'A': 0}
names = {'B': ['start'], 'A': ['start']}
CLK = 's_memtime' if OPT['clk'] else 's_memrealtime'
STV = 15
NSTAMP = 24
def stamp(a, role, name=''):
    if not OPT['stamps']: return
    if OPT['stamps'] == 2 and name not in ('end', 'A2 done', 'o out', 'gemm', 'kv ready', 'U stored'): return
    i = nst[role]; nst[role] += 1; names[role].append(name)
    assert i < NSTAMP
    a(f"{CLK} s[{ST0}:{ST0+1}]\ns_waitcnt lgkmcnt(0)\nv_writelane_b32 v{STV}, s{ST0}, {i}")
def stamps_out(a, role):
    if not OPT['stamps']: return
    lx = L("st")
    a(f"s_cmp_lg_u32 s{sWV}, 0\ns_cbranch_scc1 {lx}")
    if OPT.get('dbgwg') is not None and role == OPT.get('dbgrole', 'B'):
        ly = L("dg")
        a(f"s_cmp_lg_u32 s2, {OPT['dbgwg']}\ns_cbranch_scc1 {ly}")
        a(f"v_mbcnt_lo_u32_b32 v1, -1, 0\nv_mbcnt_hi_u32_b32 v1, -1, v1\nv_lshlrev_b32 v1, 2, v1\nv_readlane_b32 s{sT0}, v{STV}, 0\ns_nop 3\nv_subrev_u32 v2, s{sT0}, v{STV}")
        a(f"s_mov_b64 exec, 0xfffe\nglobal_store_dword v1, v2, s[28:29]\ns_mov_b64 exec, -1\n{ly}:")
    a(f"v_mbcnt_lo_u32_b32 v1, -1, 0\nv_mbcnt_hi_u32_b32 v1, -1, v1\nv_lshlrev_b32 v1, 3, v1")
    a(f"s_mul_i32 s{sT0}, s2, {2*NSTAMP*8}\ns_add_u32 s{sT0}, s{sT0}, {W_ST + (NSTAMP*8 if role == 'A' else 0)}")
    a(f"v_mov_b32 v2, v{STV}\nv_mov_b32 v3, 0")
    a(f"s_mov_b64 exec, 0xffffff")
    a(f"buffer_store_dwordx2 v[2:3], v1, {srd(S_WS)}, s{sT0} offen")
    a(f"{lx}:")

def signal(a, cnt, vSM, vOne):
    a("s_mov_b64 exec, 1")
    a(f"ds_add_u32 v{vSM}, v{vOne} offset:{cnt}")
    a("s_mov_b64 exec, -1")
def lwait(a, cnt, vSM, vT, n=4):
    l = L("w")
    a(f"{l}:")
    a(f"ds_read_b32 v{vT}, v{vSM} offset:{cnt}")
    a(f"s_sub_u32 s{sBUD}, s{sBUD}, 1\ns_cbranch_scc1 LEND")
    a("s_waitcnt lgkmcnt(0)")
    a(f"v_readfirstlane_b32 s{sT0}, v{vT}")
    a(f"s_cmp_ge_u32 s{sT0}, {n}\ns_cbranch_scc0 {l}")
def gpoll(a, vDst, vAddr, sOff, vNon):
    lp = L("gp")
    a(f"{lp}:\nbuffer_load_dword v{vDst}, v{vAddr}, {srd(S_WS)}, s{sOff} offen sc1")
    a(f"s_sub_u32 s{sBUD}, s{sBUD}, 4\ns_cbranch_scc1 LEND")
    a(f"s_waitcnt vmcnt(0)\nv_cmp_ne_u32 vcc, v{vDst}, v{vNon}\ns_cbranch_vccnz {lp}")

def mfma32(a, d, A, B, c=None):
    cs = f"v[{c}:{c+15}]" if c is not None else "0"
    a(f"v_mfma_f32_32x32x16_bf16 v[{d}:{d+15}], v[{A}:{A+3}], v[{B}:{B+3}], {cs}")
def mfma16(a, d, A, B, c=None):
    cs = f"v[{c}:{c+3}]" if c is not None else "0"
    a(f"v_mfma_f32_16x16x32_bf16 v[{d}:{d+3}], v[{A}:{A+3}], v[{B}:{B+3}], {cs}")

def dmap(m):
    if m in (11, 15): return 28
    if m in (27, 31): return 29
    return m - (m > 11) - (m > 15) - (m > 27)

def bf16(x):
    u = struct.unpack('<I', struct.pack('<f', x))[0]
    return ((u + 0x7FFF + ((u >> 16) & 1)) >> 16) & 0xFFFF
def f32(x): return struct.unpack('<I', struct.pack('<f', x))[0]

T_M1 = 0; T_END = T_M1 + 2048
def tables():
    w = []
    for i in range(2):
        for l in range(64):
            j, hh = l & 31, l >> 5
            c, comp = j >> 1, j & 1
            vals = []
            for jj in range(8):
                s1 = 16*i + (jj & 3) + 8*(jj >> 2) + 4*hh
                if comp == 0: v = math.cos(2*math.pi*((c*s1) % 32)/32)
                elif c: v = -math.sin(2*math.pi*((c*s1) % 32)/32)
                else: v = math.cos(math.pi*s1)
                if abs(v) < 1e-9: v = 0.0
                vals.append(bf16(v))
            w += [vals[2*k] | (vals[2*k+1] << 16) for k in range(4)]
    out = []
    for i in range(0, len(w), 8):
        out.append(".long " + ",".join("0x%x" % x for x in w[i:i+8]))
    return "\n".join(out), 4*len(w)

def prologue(a):
    a("s_load_dwordx16 s[8:23], s[0:1], 0")
    a("s_load_dwordx8 s[24:31], s[0:1], 64")
    a("s_cmp_ge_u32 s2, 256\ns_cbranch_scc1 LEND")
    if OPT.get('epf', 0):
        l = L("pc")
        a(f"s_getpc_b64 s[4:5]\n{l}:\nv_lshlrev_b32 v1, 7, v0\nv_min_u32 v1, LTAB-{l}+{T_END}-4, v1\nglobal_load_dword v255, v1, s[4:5]")
    a(f"s_memrealtime s[{ST0}:{ST0+1}]")
    if OPT['stamps']:
        a(f"{CLK} s[{ST0+2}:{ST0+3}]")
    a("v_lshrrev_b32 v1, 6, v0\nv_and_b32 v0, 63, v0")
    a(f"v_mov_b32 v10, {SM}\nv_mov_b32 v11, 0\nv_lshl_add_u32 v2, v0, 2, v10\nds_write_b32 v2, v11\nv_mov_b32 v11, 1")
    a(f"s_and_b32 s{sXCD}, s2, 7\ns_lshr_b32 s{sI}, s2, 3")
    a(f"v_readfirstlane_b32 s{sWV}, v1")
    hpx = OPT['hpx']; lh = hpx.bit_length() - 1; lr_ = 5 - lh
    a(f"s_and_b32 s{sH}, s{sXCD}, {16//hpx - 1}\ns_lshl_b32 s{sH}, s{sH}, {lh}\ns_lshr_b32 s{sT0}, s{sI}, {lr_}\ns_add_u32 s{sH}, s{sH}, s{sT0}")
    a(f"s_lshr_b32 s{sRB}, s{sXCD}, {4-lh}\ns_lshl_b32 s{sRB}, s{sRB}, {lr_}\ns_and_b32 s{sT0}, s{sI}, {32//hpx - 1}\ns_add_u32 s{sRB}, s{sRB}, s{sT0}")
    a(f"s_lshl_b32 s{sROT}, s{sH}, 1\ns_add_u32 s{sROT}, s{sROT}, s{sRB}\ns_mul_i32 s{sT0}, s{sROT}, 37\ns_lshr_b32 s{sT0}, s{sT0}, 8\ns_mul_i32 s{sT0}, s{sT0}, 7\ns_sub_u32 s{sROT}, s{sROT}, s{sT0}")
    a(f"s_mov_b32 s{sBUD}, 0x200000")
    a(f"s_cmp_lt_u32 s{sWV}, 4\ns_cbranch_scc1 LB")
    a(f"s_sub_u32 s{sWV}, s{sWV}, 4")

def mk_srd(a, s, p, nbytes):
    a(f"s_mov_b32 s{s}, s{p}\ns_mov_b32 s{s+1}, s{p+1}\ns_mov_b32 s{s+2}, {nbytes}\ns_mov_b32 s{s+3}, 0x20000")

def table_base(a):
    a(f"s_getpc_b64 s[{sTAB}:{sTAB+1}]")
    l = L("pc")
    a(f"{l}:")
    a(f"s_add_u32 s{sTAB}, s{sTAB}, LTAB-{l}\ns_addc_u32 s{sTAB+1}, s{sTAB+1}, 0")

SEQS = {
 0: [[0, 1, 2, 3], [4, 5, 6]],
 1: [[0, 1], [2, 3], [4, 5, 6]],
 2: [[0, 1, 2], [3, 4, 5, 6]],
 3: [[0, 1, 2, 3, 4, 5, 6]],
}
SEQ = SEQS[OPT['seq']]

class Gather:
    def __init__(self, a, n, per, R, issue, consume, vH, vHA, sHO, vNon, vCK, vTag, sLO_, sMS, sGO, mark):
        self.__dict__.update(locals())
        self.all = (1 << n) - 1
    def poll(self):
        self.a(f"buffer_load_dword v{self.vH}, v{self.vHA}, {srd(S_WS)}, s{self.sHO} offen sc1")
    def ask(self, l):
        a = self.a
        if self.sHO is None: a(f"s_mov_b32 s{self.sGO}, s{self.sMS}")
        else: a(f"v_cmp_eq_u32 vcc, v{self.vH}, v{self.vNon}\ns_and_b32 s{self.sGO}, vcc_lo, s{self.sMS}")
        for p in range(self.n):
            a(f"s_bitcmp1_b32 s{self.sGO}, {p}\ns_cbranch_scc0 {l}i{p}")
            self.issue(p)
            a(f"{l}i{p}:")
    def take(self, l, counted):
        a = self.a
        for p in range(self.n):
            r = self.R(p)
            a(f"s_bitcmp1_b32 s{self.sGO}, {p}\ns_cbranch_scc0 {l}c{p}")
            if counted: a(f"s_waitcnt vmcnt({self.per*(self.n-1-p)})")
            a(f"v_bitop3_b32 v{self.vCK}, v{r+3}, v{r+7}, v{self.vTag} bitop3:0x7e")
            for k in range(2, self.per): a(f"v_bitop3_b32 v{self.vCK}, v{self.vCK}, v{r+4*k+3}, v{self.vTag} bitop3:0xf6")
            a(f"v_cmp_lt_u32 vcc, s{self.sLO_}, v{self.vCK}\ns_cbranch_vccnz {l}c{p}")
            self.consume(p)
            a(f"s_bitset0_b32 s{self.sMS}, {p}\n{l}c{p}:")
    def first_ask(self):
        self.l = L("ga")
        if self.sHO is None:
            self.a(f"s_mov_b32 s{self.sMS}, {self.all}\ns_mov_b32 s{self.sGO}, {self.all}")
            for p in range(self.n): self.issue(p)
            return
        self.a(f"s_mov_b32 s{self.sMS}, {self.all}\ns_waitcnt vmcnt(0)")
        self.ask(self.l + "a")
    def finish(self, fast=None, first=None):
        a = self.a; l = self.l
        if fast is not None:
            for p in range(self.n):
                r = self.R(p)
                a(f"s_waitcnt vmcnt({self.per*(self.n-1-p) + getattr(self, 'extra', 0)})")
                if not first: self.consume(p)
                if p == 0: a(f"v_bitop3_b32 v{self.vCK}, v{r+3}, v{r+7}, v{self.vTag} bitop3:0x7e")
                else: a(f"v_bitop3_b32 v{self.vCK}, v{self.vCK}, v{r+3}, v{self.vTag} bitop3:0xf6\nv_bitop3_b32 v{self.vCK}, v{self.vCK}, v{r+7}, v{self.vTag} bitop3:0xf6")
                if first: first(p)
            a(f"v_cmp_lt_u32 vcc, s{self.sLO_}, v{self.vCK}\ns_cbranch_vccz {l}x")
            fast()
            self.take(l + "b", False)
        else:
            a(f"s_cmp_eq_u32 s{self.sGO}, {self.all}\ns_cbranch_scc1 {l}f\ns_waitcnt vmcnt(0)\n{l}f:")
            self.take(l + "b", True)
        self.retry()
    def retry(self):
        a = self.a; l = self.l
        a(f"{l}r:\ns_cmp_eq_u32 s{self.sMS}, 0\ns_cbranch_scc1 {l}x")
        if OPT['stamps']: a(f"v_writelane_b32 v{STV}, s{sBUD}, {self.mark}")
        a(f"s_sleep {OPT.get('slp', 8)}")
        if self.sHO is not None: self.poll()
        a(f"s_sub_u32 s{sBUD}, s{sBUD}, 8\ns_cbranch_scc1 LEND\ns_waitcnt vmcnt(0)")
        self.ask(l + "d")
        a("s_waitcnt vmcnt(0)")
        self.take(l + "e", False)
        a(f"s_branch {l}r\n{l}x:")

def gen_A(a):
    vm = VM(a)
    vW = [2, 3]; vX = [4, 5, 6, 7]; vXP = 8; vL16 = 9; vSM = 10; vOne = 11; vT = 12; vNon = 13; vT2 = 14; vZ = 29
    sXO, sWO_ = sT1, sT2
    sCW, sCX = 89, 62
    sWD, sXB = 86, 63
    sS2, sQ = 5, 3
    sMW, sMX = 88, 87
    if OPT.get('aprio', 1): a(f"s_setprio {OPT.get('aprio', 1)}")
    a(f"v_lshrrev_b32 v{vT}, 3, v0\nv_mul_u32_u24 v{vX[0]}, 896, v{vT}")
    a(f"v_and_b32 v{vT2}, 7, v0\nv_lshrrev_b32 v1, 4, v0\nv_xor_b32 v{vT2}, v{vT2}, v1\nv_lshlrev_b32 v{vT2}, 4, v{vT2}")
    a(f"v_lshl_add_u32 v{vXP}, v{vX[0]}, 6, v{vT2}\nv_add_u32 v{vX[0]}, v{vX[0]}, v{vT2}")
    a(f"v_xor_b32 v{vX[1]}, 64, v{vX[0]}\nv_add_u32 v{vX[2]}, {2*6144}, v{vX[0]}\nv_add_u32 v{vX[3]}, {3*6144}, v{vX[1]}\nv_add_u32 v{vX[1]}, 6144, v{vX[1]}")
    a(f"s_lshl_b32 s{sXB}, s{sRB}, 2\ns_add_u32 s{sXB}, s{sXB}, s{sWV}\ns_mul_i32 s{sXB}, s{sXB}, {32*896}")
    a(f"s_mov_b32 s{sCX}, s{sROT}\ns_lshl_b32 s{sMX}, s{sWV}, 12\ns_add_u32 s{sMX}, s{sMX}, {XR0}")
    a(f"v_lshrrev_b32 v{vT}, 2, v0\nv_mul_u32_u24 v{vW[0]}, 2688, v{vT}\nv_and_b32 v{vT}, 3, v0\nv_lshl_add_u32 v{vW[0]}, v{vT}, 4, v{vW[0]}")
    a(f"v_add_u32 v{vW[1]}, {16*2688-1024}, v{vW[0]}")
    a(f"s_and_b32 s{sT0}, s{sWV}, 1\ns_mul_i32 s{sWD}, s{sT0}, {32*2688}\ns_lshr_b32 s{sT0}, s{sWV}, 1\ns_add_u32 s{sT0}, s{sT0}, 1\ns_mul_i32 s{sT0}, s{sT0}, 896")
    a(f"s_add_u32 s{sWD}, s{sWD}, s{sT0}\ns_mul_i32 s{sT0}, s{sH}, 56\ns_add_u32 s{sWD}, s{sWD}, s{sT0}")
    a(f"s_lshl_b32 s{sMW}, s{sWV}, 11\ns_mov_b32 s{sCW}, s{sROT}")
    a("s_waitcnt lgkmcnt(0)")
    mk_srd(a, S_BX, 18, 2048*896); mk_srd(a, S_W, 20, 448*2688)
    def xpart(i, part):
        a(f"s_lshl_b32 s{sXO}, s{sCX}, 7\ns_add_u32 s{sXO}, s{sXO}, s{sXB}")
        a(f"s_add_u32 m0, s{sMX}, {(i % 4)*SLOT}")
        if part != 0: a(f"s_add_u32 s{sCX}, s{sCX}, 1")
        else: a("s_nop 0")
        for k in {0: (0, 1), 1: (2, 3), 2: (0, 1, 2, 3)}[part]:
            a(f"buffer_load_dwordx4 v{vX[k]}, {srd(S_BX)}, s{sXO} offen offset:{1024*k} lds")
            vm.issue(f"c{i}")
        if part != 0: a(f"s_cmp_eq_u32 s{sCX}, 7\ns_cselect_b32 s{sCX}, 0, s{sCX}")
    def xchunk(i): xpart(i, 2)
    def wchunk(j):
        a(f"s_mul_i32 s{sWO_}, s{sCW}, {64*2688}\ns_add_u32 m0, s{sMW}, {WKV + j*8192}\ns_add_u32 s{sWO_}, s{sWO_}, s{sWD}")
        a(f"s_add_u32 s{sCW}, s{sCW}, 1")
        for k in range(2):
            a(f"buffer_load_dwordx4 v{vW[k]}, {srd(S_W)}, s{sWO_} offen offset:{1024*k} lds")
        a(f"s_cmp_eq_u32 s{sCW}, 7\ns_cselect_b32 s{sCW}, 0, s{sCW}")
        vm.issue(f"c{j}", 2)
    if OPT.get('alt', 1):
        la = L("alt")
        a(f"s_bitcmp1_b32 s{sI}, 0\ns_cbranch_scc1 {la}")
        xchunk(0); wchunk(0)
        a(f"s_branch {la}x\n{la}:")
        vm.q = []
        wchunk(0); xchunk(0)
        a(f"{la}x:")
    else:
        xchunk(0); wchunk(0)
    a(f"s_lshr_b32 s{sT0}, s{sI}, 2\ns_lshl_b32 s{sS2}, s{sXCD}, 3\ns_add_u32 s{sS2}, s{sS2}, s{sT0}\ns_and_b32 s{sQ}, s{sI}, 3")
    mk_srd(a, S_AX, 8, 2048*896)
    def load_m1(tag):
        a(f"global_load_dwordx4 v[20:23], v{vL16}, s[{sTAB}:{sTAB+1}] offset:{T_M1}")
        a(f"global_load_dwordx4 v[24:27], v{vL16}, s[{sTAB}:{sTAB+1}] offset:{T_M1+1024}")
        vm.issue(tag, 2)
    sXI, sXS = 69, 70
    def xp_steps():
        def step(n):
            def f():
                if n == 0:
                    a(f"s_and_b32 s{sT0}, s{sWV}, 1\ns_lshl_b32 s{sT0}, s{sT0}, 6\nv_xor_b32 v{vXP}, s{sT0}, v{vXP}")
                    a(f"s_lshl_b32 s{sXS}, s{sWV}, 9\ns_add_u32 s{sXS}, s{sXS}, s{sS2}\ns_mul_i32 s{sXS}, s{sXS}, 896\ns_lshl_b32 s{sXI}, s{sQ}, {1 if OPT.get('rot2', 1) else 31}\ns_and_b32 s{sXI}, s{sXI}, 7")
                else:
                    a(f"s_add_u32 s{sXI}, s{sXI}, 1\ns_cmp_eq_u32 s{sXI}, 7\ns_cselect_b32 s{sXI}, 0, s{sXI}")
                a(f"s_lshl_b32 s{sT0}, s{sXI}, 2\ns_add_u32 s{sT0}, s{sT0}, s{sWV}\ns_lshl_b32 s{sT0}, s{sT0}, 10\ns_add_u32 m0, s{sT0}, {XP}\ns_lshl_b32 s{sXO}, s{sXI}, 7\ns_add_u32 s{sXO}, s{sXO}, s{sXS}")
                a(f"buffer_load_dwordx4 v{vXP}, {srd(S_AX)}, s{sXO} offen lds")
                vm.issue("xp")
            return f
        return [step(n) for n in range(7)]
    def load_xp():
        for f in xp_steps(): f()
    a(f"v_lshlrev_b32 v{vL16}, 4, v0")
    table_base(a)
    XPOS = OPT.get('xpos', 10)
    if OPT['stamps']:
        a(f"v_mov_b32 v{STV}, 0\nv_writelane_b32 v{STV}, s{ST0+2}, 0"); nst['A'] = 1
    a(f"v_mov_b32 v{vZ}, 0")
    ln = L("non")
    a(f"s_or_b32 s{sT0}, s2, s{sWV}\ns_cmp_lg_u32 s{sT0}, 0\ns_cbranch_scc1 {ln}")
    a(f"s_or_b32 s{sT0}, s{ST0}, 1\nv_mov_b32 v{vT}, s{sT0}")
    a(f"s_mov_b64 exec, 1\nglobal_store_dword v{vZ}, v{vT}, s[28:29] sc1\ns_mov_b64 exec, -1")
    a(f"{ln}:")
    if OPT['lst']: stamp(a, 'A', 'first issued')
    def load_wq():
        a(f"s_mul_i32 s{sT5}, s{sWV}, {16*2688}\ns_mul_i32 s{sT0}, s{sH}, 56\ns_add_u32 s{sT5}, s{sT5}, s{sT0}\ns_lshl_b32 s{sT0}, s{sWV}, 10")
        a(f"s_add_u32 m0, s{sT0}, {WQ}\ns_mov_b32 s{sT4}, s{sROT}")
        for i in range(7):
            a(f"s_mul_i32 s{sWO_}, s{sT4}, {64*2688}\ns_add_u32 s{sWO_}, s{sWO_}, s{sT5}")
            a(f"buffer_load_dwordx4 v{vW[0]}, {srd(S_W)}, s{sWO_} offen lds")
            if i < 6:
                a(f"s_add_u32 m0, m0, 4096")
                a(f"s_add_u32 s{sT4}, s{sT4}, 1\ns_cmp_eq_u32 s{sT4}, 7\ns_cselect_b32 s{sT4}, 0, s{sT4}")
        vm.issue("wq", 7)
    FG = 128; GEN = 80; K2 = 96; vE = 98
    a(f"s_lshl_b32 s{sT0}, s{sQ}, 6\ns_and_b32 s{sT4}, s{sWV}, 1\ns_lshl_b32 s{sT4}, s{sT4}, 5\ns_add_u32 s{sT0}, s{sT0}, s{sT4}")
    a(f"v_and_b32 v{vE}, 31, v0\nv_add_u32 v{vE}, s{sT0}, v{vE}")
    a(f"s_cmp_lt_u32 s{sWV}, 2\ns_cselect_b32 s{sT4}, 0, 0x3e800000")
    a(f"s_mov_b32 s{sT5}, {hex(f32(1/448))}")
    a(f"v_cvt_f32_u32 v1, v{vE}\nv_mul_f32 v1, s{sT5}, v1\nv_sin_f32 v{vT}, v1\nv_cos_f32 v{vT2}, v1")
    a(f"v_lshrrev_b32 v99, 5, v0\nv_mul_u32_u24 v99, 224, v99\nv_add_u32 v99, 444, v99\nv_mul_u32_u24 v99, v99, v{vE}")
    a(f"v_mul_f32 v{vT}, v{vT}, v{vT}\nv_mul_f32 v{vT2}, v{vT2}, v{vT2}")
    a(f"v_cmp_lt_f32 vcc, v{vT}, v{vT2}\nv_fma_f32 v{vT}, v{vT}, -4.0, 2.0\nv_fma_f32 v{vT2}, v{vT2}, 4.0, -2.0\nv_cndmask_b32 v{K2}, v{vT2}, v{vT}, vcc")
    a(f"v_mov_b32 v100, s{sT4}")
    for k in range(4):
        r = GEN + 12 + k
        a(f"v_lshrrev_b32 v1, 6, v99\nv_mul_u32_u24 v1, 9363, v1\nv_lshrrev_b32 v1, 16, v1\nv_mul_u32_u24 v1, 448, v1\nv_sub_u32 v1, v99, v1")
        a(f"v_cvt_f32_u32 v1, v1\nv_fma_f32 v1, v1, s{sT5}, v100\nv_cos_f32 v{r}, v1")
        if k < 3: a(f"v_add_u32 v99, v99, v{vE}")
    lg_ = L("gen")
    a(f"s_mov_b32 s{sT0}, 0\n{lg_}:")
    p2, p1 = GEN+12, GEN+14
    for i in range(2):
        g = GEN + 8*i
        for j in range(4):
            d = g + 2*j
            a(f"v_pk_fma_f32 v[{d}:{d+1}], v[{K2}:{K2+1}], v[{p1}:{p1+1}], v[{p2}:{p2+1}] op_sel_hi:[0,1,1] neg_lo:[0,0,1] neg_hi:[0,0,1]")
            p2, p1 = p1, d
    a(f"s_set_gpr_idx_on s{sT0}, gpr_idx(DST)")
    for j in range(8): a(f"v_cvt_pk_bf16_f32 v{FG+j}, v{GEN+2*j}, v{GEN+2*j+1}")
    a(f"s_set_gpr_idx_off\ns_add_u32 s{sT0}, s{sT0}, 8\ns_cmp_lt_u32 s{sT0}, {OPT.get('genn', 112)}\ns_cbranch_scc1 {lg_}")
    if OPT['lst']: stamp(a, 'A', 'gen')
    mk_srd(a, S_WO, 24, 448*896); mk_srd(a, S_WS, 30, 0x10000000); mk_srd(a, S_OUT, 26, 2048*1792)
    aXP = 48
    a(f"v_and_b32 v1, 31, v0\nv_lshrrev_b32 v{vT2}, 5, v0\nv_bfe_u32 v{vT}, v0, 1, 3\nv_lshlrev_b32 v{vT2}, 2, v{vT2}\nv_xor_b32 v{vT}, v{vT}, v{vT2}")
    a(f"v_lshlrev_b32 v1, 7, v1\nv_lshl_add_u32 v1, v{vT}, 4, v1\nv_add_u32 v1, {XP}, v1")
    a(f"v_mul_u32_u24 v{vT2}, {3*1024}, v{vT2}\nv_add_u32 v1, v1, v{vT2}")
    a(f"v_lshrrev_b32 v{vT2}, 5, v0\nv_lshlrev_b32 v{vT2}, 12, v{vT2}")
    for k in range(8):
        a(f"v_xor_b32 v{aXP+k}, {16*k}, v1")
        if k >= 4: a(f"v_add_u32 v{aXP+k}, v{aXP+k}, v{vT2}")
    sCL, sQ2, sTQ, sUA, sUB, sUF = 64, 4, 65, 66, 67, 68
    vTT = 28; FR, FI, NFI = 32, 40, 240
    def fs_gen():
        a(f"s_lshr_b32 s{sCL}, s{sI}, 4\ns_lshl_b32 s{sT0}, s{sXCD}, 1\ns_add_u32 s{sCL}, s{sCL}, s{sT0}\ns_lshr_b32 s{sQ2}, s{sI}, 2\ns_and_b32 s{sQ2}, s{sQ2}, 3\ns_and_b32 s{sTQ}, s{sI}, 3")
        a(f"s_cmp_lt_u32 s{sTQ}, 2\ns_cselect_b32 s{sT4}, 16, -992\ns_cmp_eq_u32 s{sCL}, 0\ns_cselect_b32 s{sT4}, s{sT4}, s{sCL}")
        a(f"s_lshl_b32 s{sT0}, s{sTQ}, 9\ns_add_u32 s{sT0}, s{sT0}, s{sT4}")
        a(f"v_and_b32 v1, 15, v0\nv_lshlrev_b32 v1, 5, v1\nv_add_u32 v{vTT}, s{sT0}, v1")
        a(f"v_cvt_f32_u32 v30, v{vTT}\nv_mul_f32 v30, {hex(f32(1/2048))}, v30\nv_lshrrev_b32 v1, 4, v0\nv_lshlrev_b32 v1, 3, v1\nv_cvt_f32_u32 v1, v1\nv_mul_f32 v31, v30, v1")
        a(f"s_mov_b32 s{sT4}, 0x80008000\ns_mov_b32 s{sT0}, {hex(f32(24.0))}")
        for ks in range(2):
            if ks: a(f"v_fma_f32 v31, v30, s{sT0}, v31")
            for jp in range(4):
                a(f"v_cos_f32 v248, v31\nv_sin_f32 v250, -v31\nv_add_f32 v31, v31, v30\nv_cos_f32 v249, v31\nv_sin_f32 v251, -v31\nv_add_f32 v31, v31, v30")
                a(f"v_cvt_pk_bf16_f32 v{FR+4*ks+jp}, v248, v249\nv_cvt_pk_bf16_f32 v{FI+4*ks+jp}, v250, v251\nv_xor_b32 v{NFI+4*ks+jp}, s{sT4}, v{FI+4*ks+jp}")
    ACC, XR = 64, 96
    def a1_slice(i0_, i1_):
        n = i1_ - i0_
        for i in range(i0_, i1_):
            a(f"ds_read_b128 v[{XR+4*(i-i0_)}:{XR+4*(i-i0_)+3}], v{aXP+(i&7)} offset:{(i>>3)*4096}")
        for i in range(i0_, i1_):
            a(f"s_waitcnt lgkmcnt({i1_-1-i})")
            mfma32(a, ACC, XR+4*(i-i0_), FG+4*i, ACC if i else None)
    aSW, aSR, vUO = 56, 60, 61
    REST = None
    vWO = [16, 17, 18, 19]
    def u_addr():
        a(f"s_lshl_b32 s{sT0}, s{sWV}, 11\ns_add_u32 s{sT0}, s{sT0}, {STG}")
        a(f"v_and_b32 v1, 31, v0\nv_lshlrev_b32 v1, 6, v1\nv_bfe_u32 v{vT}, v0, 1, 2\nv_lshl_add_u32 v1, v{vT}, 4, v1\nv_lshrrev_b32 v{vT}, 5, v0\nv_lshl_add_u32 v1, v{vT}, 3, v1\nv_add_u32 v1, s{sT0}, v1")
        for k in range(4): a(f"v_xor_b32 v{aSW+k}, {16*k}, v1")
        a(f"v_bfe_u32 v{vT}, v0, 3, 2\nv_and_b32 v1, 3, v0\nv_xor_b32 v{vT}, v{vT}, v1\nv_lshrrev_b32 v{aSR}, 2, v0\nv_lshlrev_b32 v{aSR}, 6, v{aSR}\nv_lshl_add_u32 v{aSR}, v{vT}, 4, v{aSR}\nv_add_u32 v{aSR}, s{sT0}, v{aSR}")
        a(f"s_bfe_u32 s{sT0}, s{sS2}, 0x10001\ns_bfe_u32 s{sT4}, s{sS2}, 0x10003\ns_lshl_b32 s{sT4}, s{sT4}, 1\ns_or_b32 s{sT0}, s{sT0}, s{sT4}\ns_lshl_b32 s{sT0}, s{sT0}, 5")
        a(f"s_and_b32 s{sT4}, s{sWV}, 1\ns_lshl_b32 s{sT4}, s{sT4}, 6\ns_xor_b32 s{sT0}, s{sT0}, s{sT4}")
        a(f"v_lshlrev_b32 v1, 4, v1\nv_xor_b32 v1, s{sT0}, v1\nv_lshrrev_b32 v{vT}, 3, v0\nv_lshl_add_u32 v1, v{vT}, 17, v1\nv_bfe_u32 v{vT}, v0, 2, 1\nv_lshl_add_u32 v{vUO}, v{vT}, 13, v1")
        a(f"s_lshl_b32 s{sT0}, s{sQ}, 1\ns_lshr_b32 s{sT4}, s{sWV}, 1\ns_add_u32 s{sT0}, s{sT0}, s{sT4}")
        a(f"s_lshl_b32 s{sUA}, s{sT0}, 14\ns_lshl_b32 s{sT4}, s{sS2}, 7\ns_add_u32 s{sUA}, s{sUA}, s{sT4}\ns_add_u32 s{sUA}, s{sUA}, {W_U}\ns_add_u32 s{sUB}, s{sUA}, 0x100000")
        a(f"v_lshrrev_b32 v1, 3, v0\nv_bfe_u32 v{vT}, v0, 4, 1\nv_lshlrev_b32 v{vT}, 2, v{vT}\nv_and_b32 v{vT2}, 7, v0\nv_xor_b32 v{vT}, v{vT}, v{vT2}\nv_mul_u32_u24 v1, 896, v1\nv_lshl_add_u32 v{vWO[0]}, v{vT}, 4, v1")
    def stage1():
        for j in range(8): a(f"v_cvt_pk_bf16_f32 v{GEN+j}, v{ACC+2*j}, v{ACC+2*j+1}")
        mfma32(a, ACC, GEN, 20, None)
        mfma32(a, ACC, GEN+4, 24, ACC)
        lwait(a, C_A1D, vSM, vT)
        a("s_nop 7")
        for j in range(8): a(f"v_cvt_pk_bf16_f32 v{GEN+j}, v{ACC+2*j}, v{ACC+2*j+1}")
        for k in range(4): a(f"ds_write_b64 v{aSW+k}, v[{GEN+2*k}:{GEN+2*k+1}]")
        a("s_waitcnt lgkmcnt(0)")
        a(f"ds_read_b128 v[{XR}:{XR+3}], v{aSR}\nds_read_b128 v[{XR+4}:{XR+7}], v{aSR} offset:1024")
        a(f"v_and_b32 v1, 3, v0\nv_lshlrev_b32 v1, 3, v1\nv_lshrrev_b32 v1, v1, v{vNon}\ns_mov_b32 s{sT0}, 0x00010001")
        for k in range(4):
            a(f"v_bfe_u32 v{vT}, v1, {2*k}, 2\nv_mul_u32_u24 v{vT}, 0x8001, v{vT}\nv_and_b32 v{104+k}, s{sT0}, v{vT}")
        a("s_waitcnt lgkmcnt(0)")
        for k in range(8):
            a(f"v_lshrrev_b32 v{vT}, 1, v{XR+k}\nv_bitop3_b32 v{vT}, v{vT}, v{XR+k}, s{sT0} bitop3:0x80\nv_add_u32 v{XR+k}, v{XR+k}, v{vT}\nv_bfi_b32 v{XR+k}, s{sT0}, v{104+(k&3)}, v{XR+k}")
        a(f"buffer_store_dwordx4 v[{XR}:{XR+3}], v{vUO}, {srd(S_WS)}, s{sUA} offen sc1")
        a(f"buffer_store_dwordx4 v[{XR+4}:{XR+7}], v{vUO}, {srd(S_WS)}, s{sUB} offen sc1")
        vm.issue("u", 2)
        signal(a, C_A1E, vSM, vOne)
    def warm():
        lw = L("wm")
        a(f"s_cmp_lt_u32 s{sWV}, 2\ns_cbranch_scc1 {lw}a\ns_cmp_eq_u32 s{sWV}, 2\ns_cbranch_scc1 {lw}b")
        a(f"s_and_b32 s{sT0}, s{sRB}, 7\ns_mul_i32 s{sT0}, s{sT0}, {56*2688}\ns_mul_i32 s{sT4}, s{sH}, 56\ns_add_u32 s{sT0}, s{sT0}, s{sT4}")
        a(f"v_mul_u32_u24 v1, 2688, v0\nbuffer_load_dword v30, v1, {srd(S_W)}, s{sT0} offen\nbuffer_load_dword v31, v1, {srd(S_W)}, s{sT0} offen offset:52\ns_branch {lw}x")
        a(f"{lw}b:")
        a(f"v_lshrrev_b32 v1, 3, v0\nv_mul_u32_u24 v1, 896, v1\nv_lshlrev_b32 v1, 6, v1\nv_and_b32 v30, 7, v0\nv_min_u32 v30, 6, v30\nv_lshl_add_u32 v1, v30, 7, v1")
        a(f"s_lshl_b32 s{sT0}, s{sQ}, 9\ns_add_u32 s{sT0}, s{sT0}, s{sS2}\ns_mul_i32 s{sT0}, s{sT0}, 896")
        a(f"buffer_load_dword v30, v1, {srd(S_AX)}, s{sT0} offen\nbuffer_load_dword v31, v1, {srd(S_AX)}, s{sT0} offen\ns_branch {lw}x")
        a(f"{lw}a:")
        a(f"s_lshl_b32 s{sT0}, s{sI}, 1\ns_add_u32 s{sT0}, s{sT0}, s{sWV}\ns_mul_i32 s{sT0}, s{sT0}, {49*128}\nv_min_u32 v1, 48, v0\nv_lshlrev_b32 v1, 7, v1")
        a(f"buffer_load_dword v30, v1, {srd(S_WO)}, s{sT0} offen\nbuffer_load_dword v31, v1, {srd(S_WO)}, s{sT0} offen")
        a(f"{lw}x:")
        vm.issue("pf", 2)
    spf = []
    if OPT.get('spf', 0):
        sPA, sPB = 94, 96
        a(f"s_mul_i32 s{sT0}, s{sI}, 98\ns_mul_i32 s{sT4}, s{sWV}, 49\ns_lshr_b32 s{sT4}, s{sT4}, 1\ns_add_u32 s{sT0}, s{sT0}, s{sT4}\ns_lshl_b32 s{sT0}, s{sT0}, 7\ns_add_u32 s{sPA}, s24, s{sT0}\ns_addc_u32 s{sPA+1}, s25, 0")
        a(f"s_lshl_b32 s{sT0}, s{sQ}, 2\ns_add_u32 s{sT0}, s{sT0}, s{sWV}\ns_lshl_b32 s{sT0}, s{sT0}, 7\ns_add_u32 s{sT0}, s{sT0}, s{sS2}\ns_mul_i32 s{sT0}, s{sT0}, 896\ns_add_u32 s{sPB}, s8, s{sT0}\ns_addc_u32 s{sPB+1}, s9, 0")
        halves = (0, 64) if OPT.get('spf', 0) == 2 else (0,)
        spf += [f"s_load_dword s98, s[{sPB}:{sPB+1}], {r*57344 + k*128 + hf}" for r in range(2) for k in range(7) for hf in halves]
        spf += [f"s_load_dword s98, s[{sPA}:{sPA+1}], {k*128 + hf}" for k in range(25) for hf in halves]
    u_addr()
    if OPT['lst']: stamp(a, 'A', 'addr')
    def stream(halves):
        seq = []
        for c in range(1, 7): seq += [(wchunk, c), (lambda c_: xpart(c_, 0), c), (lambda c_: xpart(c_, 1), c)] if OPT.get('wf', 0) else [(lambda c_: xpart(c_, 0), c), (lambda c_: xpart(c_, 1), c), (wchunk, c)]
        pos = 0
        def upto(n):
            nonlocal pos
            while pos < min(n, len(seq)):
                f, c = seq[pos]; f(c); pos += 1
        upto(halves - 3)
        for c in range(7):
            vm.wait(f"c{c}")
            if c == 6: a("s_waitcnt lgkmcnt(0)")
            a("s_barrier")
            upto(3*c + halves)
            if c == 1: a(f"global_load_dword v{vNon}, v{vZ}, s[28:29] sc1"); vm.issue("non")
            if c == 5:
                vm.wait("non")
                lr = L("nr")
                a(f"{lr}:\nv_readfirstlane_b32 s{sNON}, v{vNon}\ns_cmp_lg_u32 s{sNON}, 0\ns_cbranch_scc1 {lr}x")
                a(f"s_sub_u32 s{sBUD}, s{sBUD}, 64\ns_cbranch_scc1 {lr}x")
                a(f"global_load_dword v{vNon}, v{vZ}, s[28:29] sc1\ns_waitcnt vmcnt(0)\ns_branch {lr}")
                a(f"{lr}x:")
                a(f"ds_write_b32 v{vSM}, v{vNon} offset:{NONCE}")
    HC, HN = OPT.get('hc', 6), OPT.get('hn', 4)
    if HC == HN: stream(HC)
    else:
        ls = L("cl")
        q0 = list(vm.q)
        a(f"s_lshr_b32 s{sT0}, 0xaa54, s{sH}\ns_bitcmp1_b32 s{sT0}, 0\ns_cbranch_scc1 {ls}")
        stream(HN)
        a(f"s_branch {ls}x\n{ls}:")
        vm.q = list(q0)
        stream(HC)
        a(f"{ls}x:")
    vm.q = []
    load_wq()
    if OPT.get('trunc'):
        a("s_waitcnt vmcnt(0)"); stamp(a, 'A', 'wq landed'); stamps_out(a, 'A'); a("s_endpgm"); return
    sWS, sWM = 60, 61
    LATE = 1
    sWI = 71
    def wo_steps():
        def step(n):
            def f():
                if n == 0:
                    a(f"s_mul_i32 s{sWS}, s{sWV}, 7168\ns_add_u32 s{sWM}, s{sWS}, {WOA}\ns_mul_i32 s{sWS}, s{sWS}, 7\ns_and_b32 s{sT0}, s{sI}, 7\ns_lshl_b32 s{sT0}, s{sT0}, 7\ns_add_u32 s{sWS}, s{sWS}, s{sT0}")
                    a(f"s_lshr_b32 s{sWI}, s{sI}, 3\ns_mul_i32 s{sWI}, s{sWI}, {7 if OPT.get('rot2', 1) else 0}\ns_lshr_b32 s{sWI}, s{sWI}, 1")
                else:
                    a(f"s_add_u32 s{sWI}, s{sWI}, 1\ns_cmp_eq_u32 s{sWI}, 14\ns_cselect_b32 s{sWI}, 0, s{sWI}")
                a(f"s_cmp_ge_u32 s{sWI}, 7\ns_cselect_b32 s{sT0}, 21, 0\ns_cselect_b32 s{sT4}, {WOB-WOA-7168}, 0\ns_add_u32 s{sT0}, s{sT0}, s{sWI}\ns_mul_i32 s{sT0}, s{sT0}, 7168\ns_add_u32 s{sT0}, s{sT0}, s{sWS}")
                a(f"s_add_u32 s{sT4}, s{sT4}, s{sWM}\ns_lshl_b32 s{sT5}, s{sWI}, 10\ns_add_u32 m0, s{sT4}, s{sT5}\ns_nop 0")
                a(f"buffer_load_dwordx4 v{vWO[0]}, {srd(S_WO)}, s{sT0} offen lds")
                vm.issue("wo")
            return f
        return [step(n) for n in range(14)]
    a("s_setprio 0")
    a(f"s_and_b32 s{sT0}, s{sI}, 7\ns_cmp_eq_u32 s{sT0}, 7\ns_cselect_b32 s{S_WO+2}, 0, s{S_WO+2}")
    vTag, vPL, vKFW, ASEL, vCK = 4, 5, 6, 124, 7
    sLO_, sPL, sMS, sGO = 86, 87, 88, 89
    KAS = [120, 108]
    PRL = [20, 32, 40, 240, 248, 80, 88, 112]
    xs = xp_steps() if XPOS == 10 else []
    wsx = wo_steps()
    for _ in range(OPT.get('x1', 2)):
        if xs: xs.pop(0)()
    a(f"s_mul_i32 s{sT0}, s{sNON}, 0x9e3779b1\nv_and_b32 v1, 3, v0\nv_cmp_lt_u32 vcc, 1, v1\nv_mov_b32 v{vT}, s{sT0}\nv_and_b32 v{vT2}, 1, v0\nv_cndmask_b32 v{vT}, v{vNon}, v{vT}, vcc")
    a(f"v_lshlrev_b32 v{vT2}, 4, v{vT2}\nv_xor_b32 v{vT2}, 16, v{vT2}\nv_lshlrev_b32 v{vT}, v{vT2}, v{vT}\nv_and_b32 v{vTag}, 0xbfff0000, v{vT}\ns_mov_b32 s{sLO_}, 0xffff")
    a(f"v_and_b32 v{vT}, 15, v0\nv_bfe_u32 v{vT2}, v0, 4, 1\nv_lshlrev_b32 v1, 4, v{vT}\nv_lshl_add_u32 v1, v{vT2}, 9, v1\nv_lshrrev_b32 v{vCK}, 5, v0")
    a(f"v_lshl_add_u32 v{vPL}, v{vCK}, 12, v1\nv_lshl_add_u32 v{vKFW}, v{vCK}, 3, v1\ns_lshl_b32 s{sT0}, s{sWV}, 10\ns_add_u32 s{sT4}, s{sT0}, {KVF}\nv_add_u32 v{vKFW}, s{sT4}, v{vKFW}")
    a(f"s_lshl_b32 s{sPL}, s{sH}, 16\ns_add_u32 s{sPL}, s{sPL}, s{sT0}\ns_add_u32 s{sPL}, s{sPL}, {W_KVP}")
    a(f"v_lshlrev_b32 v{vT2}, 2, v{vT2}\nv_sub_u32 v{vT}, v{vT}, v{vT2}")
    a(f"v_bfe_u32 v{vT2}, v{vT}, 1, 1\nv_bfe_u32 v1, v{vT}, 3, 1\nv_lshl_or_b32 v{vT2}, v1, 1, v{vT2}\nv_and_or_b32 v{vT2}, v{vT}, 4, v{vT2}")
    a(f"v_and_b32 v{vT}, 1, v{vT}\nv_lshlrev_b32 v{vT}, 4, v{vT}\nv_mov_b32 v1, 0x3f80\nv_lshlrev_b32 v{vT}, v{vT}, v1")
    for k in range(4): a(f"v_cmp_eq_u32 vcc, {k}, v{vT2}\nv_cndmask_b32 v{ASEL+k}, 0, v{vT}, vcc")
    def kazero():
        for k in range(8): a(f"v_mov_b32 v{KAS[k>>2]+(k&3)}, 0")
    kazero()
    lwait(a, C_G, vSM, vT)
    for _ in range(OPT.get('w1', 4)): wsx.pop(0)()
    vm.wait("wq"); signal(a, C_WQ, vSM, vOne)
    stamp(a, 'A', 'wq landed')
    while xs: xs.pop(0)()
    for _ in range(len(wsx) - OPT.get('wl', 0)): wsx.pop(0)()
    vm.wait("xp"); signal(a, C_XP, vSM, vOne)
    stamp(a, 'A', 'wo issued')
    A1PRE = OPT.get('a1pre', 0)
    NR = 3
    A1N = OPT.get('a1n', 28)
    def a1_loop(i0_, i1_):
        for i in range(i0_, min(i0_ + NR, i1_)):
            a(f"ds_read_b128 v[{XR+4*(i%NR)}:{XR+4*(i%NR)+3}], v{aXP+(i&7)} offset:{(i>>3)*4096}")
        for i in range(i0_, i1_):
            a(f"s_waitcnt lgkmcnt({min(NR-1, i1_-1-i)})")
            mfma32(a, ACC, XR+4*(i % NR), FG+4*i, ACC if i else None)
            if i + NR < i1_:
                n = i + NR
                a(f"ds_read_b128 v[{XR+4*(n%NR)}:{XR+4*(n%NR)+3}], v{aXP+(n&7)} offset:{(n>>3)*4096}")
    if A1PRE:
        lwait(a, C_XP, vSM, vT); a1_loop(0, A1PRE)
    lwait(a, C_QH, vSM, vT)
    def p_issue(p):
        a(f"s_add_u32 s{sT4}, s{sPL}, {8192*p}")
        for dt in range(2):
            r = PRL[p] + 4*dt
            a(f"buffer_load_dwordx4 v[{r}:{r+3}], v{vPL}, {srd(S_WS)}, s{sT4} offen offset:{256*dt} sc1")
    G1 = Gather(a, 8, 2, lambda p: PRL[p], p_issue, lambda p: [mfma16(a, KAS[dt], ASEL, PRL[p]+4*dt, KAS[dt]) for dt in range(2)], None, None, None, vNon, vCK, vTag, sLO_, sMS, sGO, 22)
    G1.first_ask()
    stamp(a, 'A', 'partials asked')
    nlate = len(wsx) if OPT.get('wb', 1) else 0
    for _ in range(nlate): wsx.pop(0)()
    G1.extra = nlate
    stamp(a, 'A', 'wo rest issued')
    lwait(a, C_XP, vSM, vT)
    a1_loop(A1PRE, A1N)
    stamp(a, 'A', 'A1 part')
    a("s_setprio 3")
    G1.finish(fast=lambda: (a("s_nop 7"), kazero()))
    a("s_nop 7")
    a(f"v_cvt_pk_bf16_f32 v80, v{KAS[0]}, v{KAS[0]+1}\nv_cvt_pk_bf16_f32 v81, v{KAS[0]+2}, v{KAS[0]+3}\nv_cvt_pk_bf16_f32 v82, v{KAS[1]}, v{KAS[1]+1}\nv_cvt_pk_bf16_f32 v83, v{KAS[1]+2}, v{KAS[1]+3}")
    a(f"ds_write_b64 v{vKFW}, v[80:81]\nds_write_b64 v{vKFW}, v[82:83] offset:256")
    a("s_waitcnt lgkmcnt(0)"); signal(a, C_B2, vSM, vOne)
    a("s_setprio 0")
    vm.q = ["wo"]*nlate
    if not wsx and not nlate: signal(a, C_WO, vSM, vOne)
    stamp(a, 'A', 'kv ready')
    load_m1("m1")
    if nlate and OPT.get('wsig', 0) == 0:
        vm.wait("wo"); signal(a, C_WO, vSM, vOne); stamp(a, 'A', 'wo landed')
    if wsx:
        while wsx: wsx.pop(0)()
    a1_loop(A1N, 28)
    signal(a, C_A1D, vSM, vOne)
    if "wo" in vm.q:
        vm.wait("wo"); signal(a, C_WO, vSM, vOne)
    vm.wait("m1")
    stage1()
    stamp(a, 'A', 'U stored')
    fs_gen()
    def u_phase():
        sUL = 62
        a(f"s_lshl_b32 s{sUL}, s{sCL}, 2\ns_add_u32 s{sUL}, s{sUL}, s{sQ2}\ns_lshl_b32 s{sUL}, s{sUL}, 2\ns_add_u32 s{sUL}, s{sUL}, s{sWV}\ns_lshl_b32 s{sUL}, s{sUL}, 13\ns_add_u32 s{sUL}, s{sUL}, {W_U}\ns_add_u32 s{sUL+1}, s{sUL}, 4096")
        a(f"s_lshl_b32 s{sT1}, s{sWV}, 13\ns_add_u32 s{sT1}, s{sT1}, {UT}\nv_add_u32 v62, s{sT1}, v{vL16}")
        a(f"v_lshrrev_b32 v1, 4, v0\nv_bfe_u32 v{vT}, v0, 2, 2\nv_lshl_add_u32 v{vT2}, v1, 3, v{vT}\nv_lshlrev_b32 v{aU}, 7, v{vT2}")
        a(f"v_and_b32 v1, 1, v1\nv_lshlrev_b32 v1, 1, v1\nv_lshrrev_b32 v{vT}, 1, v{vT}\nv_or_b32 v1, v1, v{vT}\nv_xor_b32 v1, s{sWV}, v1\nv_lshl_add_u32 v{aU}, v1, 5, v{aU}")
        a(f"v_and_b32 v1, 3, v0\nv_lshl_add_u32 v{aU}, v1, 3, v{aU}\nv_add_u32 v{aU}, {UT}, v{aU}")
        a(f"v_bfe_u32 v{vT}, v0, 4, 1\nv_lshlrev_b32 v{vT}, 1, v{vT}\nv_and_b32 v1, 3, v0\nv_xor_b32 v1, v1, v{vT}\nv_lshlrev_b32 v1, 3, v1\nv_lshrrev_b32 v1, v1, v{vNon}\ns_mov_b32 s{sT5}, 0x00010001")
        for k in range(4):
            a(f"v_bfe_u32 v{vT}, v1, {2*k}, 2\nv_mul_u32_u24 v{vT}, 0x8001, v{vT}\nv_and_b32 v{104+k}, s{sT5}, v{vT}")
        lwait(a, C_A1E, vSM, vT)
        lwait(a, C_O if OPT.get('uwait', 1) == 1 else C_B3, vSM, vT)
        if OPT.get('us', 6): a(f"s_sleep {OPT.get('us', 6)}")
        lu = L("ul")
        a(f"{lu}:")
        for k in range(8):
            a(f"buffer_load_dwordx4 v[{UL+4*k}:{UL+4*k+3}], v{vL16}, {srd(S_WS)}, s{sUL if k < 4 else sUL+1} offen offset:{1024*(k&3)} sc1")
        stamp(a, 'A', 'U asked')
        for k in range(8):
            r = UL + 4*k
            a(f"s_waitcnt vmcnt({7-k})")
            for j in range(4): a(f"v_xor_b32 v{r+j}, v{r+j}, v{104+j}")
            a(f"ds_write_b128 v62, v[{r}:{r+3}] offset:{1024*k}")
            a(f"v_or3_b32 v{vT}, v{r}, v{r+1}, v{r+2}")
            a(f"v_or_b32 v{vCK}, v{vT}, v{r+3}" if k == 0 else f"v_or3_b32 v{vCK}, v{vCK}, v{vT}, v{r+3}")
        a(f"v_and_b32 v{vCK}, s{sT5}, v{vCK}\nv_cmp_ne_u32 vcc, 0, v{vCK}\ns_cbranch_vccz {lu}x")
        if OPT['stamps']: a(f"v_writelane_b32 v{STV}, s{sBUD}, 23")
        a(f"{lu}r:\ns_mov_b32 s{sMS}, 0\ns_waitcnt lgkmcnt(0)")
        for k in range(8):
            r = UL + 4*k
            a(f"v_or3_b32 v{vCK}, v{r}, v{r+1}, v{r+2}\nv_or_b32 v{vCK}, v{vCK}, v{r+3}")
            a(f"v_and_b32 v{vCK}, s{sT5}, v{vCK}\nv_cmp_ne_u32 vcc, 0, v{vCK}\ns_cbranch_vccz {lu}k{k}")
            a(f"buffer_load_dwordx4 v[{r}:{r+3}], v{vL16}, {srd(S_WS)}, s{sUL if k < 4 else sUL+1} offen offset:{1024*(k&3)} sc1\ns_bitset1_b32 s{sMS}, {k}\n{lu}k{k}:")
        a(f"s_cmp_eq_u32 s{sMS}, 0\ns_cbranch_scc1 {lu}w\ns_waitcnt vmcnt(0)")
        for k in range(8):
            r = UL + 4*k
            a(f"s_bitcmp1_b32 s{sMS}, {k}\ns_cbranch_scc0 {lu}m{k}")
            for j in range(4): a(f"v_xor_b32 v{r+j}, v{r+j}, v{104+j}")
            a(f"{lu}m{k}:")
        a(f"s_sleep {OPT.get('slp', 8)}\ns_sub_u32 s{sBUD}, s{sBUD}, 8\ns_cbranch_scc0 {lu}r\ns_branch LEND\n{lu}w:")
        for k in range(8): a(f"ds_write_b128 v62, v[{UL+4*k}:{UL+4*k+3}] offset:{1024*k}")
        a(f"{lu}x:")
        a("s_waitcnt lgkmcnt(0)"); signal(a, C_U, vSM, vOne)
    UL = 192; aU = 63
    vYW, vYR, vD, vM, vE0 = 48, 52, 53, 54, 55
    def y_addr():
        a(f"v_and_b32 v1, 15, v0\nv_lshlrev_b32 v{vYW}, 8, v1\nv_and_b32 v1, 7, v1\nv_lshrrev_b32 v{vT}, 5, v0\ns_lshl_b32 s{sT0}, s{sWV}, 1\nv_add_u32 v{vT}, s{sT0}, v{vT}\nv_xor_b32 v{vT}, v{vT}, v1")
        a(f"v_lshl_add_u32 v{vYW}, v{vT}, 4, v{vYW}\nv_bfe_u32 v{vT}, v0, 4, 1\nv_lshl_add_u32 v{vYW}, v{vT}, 3, v{vYW}\nv_add_u32 v{vYW}, {YST}, v{vYW}\nv_xor_b32 v{vYW+1}, {128 + 7*16 + 8}, v{vYW}")
        a(f"v_lshrrev_b32 v1, 3, v0\nv_and_b32 v{vT}, 7, v0\nv_xor_b32 v{vT2}, v{vT}, v1\nv_lshlrev_b32 v{vYR}, 8, v1\nv_lshl_add_u32 v{vYR}, v{vT2}, 4, v{vYR}\ns_lshl_b32 s{sT0}, s{sWV}, 11\ns_add_u32 s{sT0}, s{sT0}, {YST}\nv_add_u32 v{vYR}, s{sT0}, v{vYR}")
        a(f"v_readfirstlane_b32 s{sT0}, v{vTT}\ns_and_b32 s{sT4}, s{sWV}, 1\ns_lshl_b32 s{sT4}, s{sT4}, 8\ns_add_u32 s{sT0}, s{sT0}, s{sT4}\nv_lshl_add_u32 v1, v1, 5, s{sT0}")
        a(f"v_sub_u32 v{vT2}, 2048, v1\ns_cmp_ge_u32 s{sWV}, 2\ns_cselect_b64 vcc, -1, 0\nv_cndmask_b32 v1, v1, v{vT2}, vcc\nv_mul_u32_u24 v1, 1792, v1")
        a(f"v_lshl_add_u32 v1, v{vT}, 4, v1\ns_lshl_b32 s{sT0}, s{sQ2}, 7\nv_add_u32 v{vD}, s{sT0}, v1\ns_sub_u32 s{sT0}, 770, s{sT0}\nv_add_u32 v{vM}, s{sT0}, v1")
    y_addr()
    u_phase()
    stamp(a, 'A', 'U here')
    lwait(a, C_WOR, vSM, vT)
    lwait(a, C_U, vSM, vT)
    AF = 168
    for bc in range(4):
        for ks in range(2):
            for sec in range(2):
                r = AF + 8*bc + 4*ks + 2*sec
                a(f"ds_read_b64_tr_b16 v[{r}:{r+1}], v{aU} offset:{bc*8192+ks*4096+sec*512}")
    PA, QA, ZA = 64, 68, 72
    lg = L("cls")
    a(f"s_cmp_lg_u32 s{sCL}, 0\ns_cbranch_scc1 {lg}g")
    a(f"s_waitcnt lgkmcnt(0)\ns_cmp_lt_u32 s{sTQ}, 2\ns_cbranch_scc1 {lg}h")
    mfma16(a, PA, AF, FR); mfma16(a, QA, AF+16, FI); mfma16(a, PA, AF+4, FR+4, PA); mfma16(a, QA, AF+20, FI+4, QA)
    a(f"s_branch {lg}x\n{lg}h:")
    mfma16(a, PA, AF+8, FR); mfma16(a, QA, AF+24, FI); mfma16(a, PA, AF+12, FR+4, PA); mfma16(a, QA, AF+28, FI+4, QA)
    a(f"s_branch {lg}x\n{lg}g:")
    a("s_waitcnt lgkmcnt(12)"); mfma16(a, PA, AF, FR); mfma16(a, PA, AF+4, FR+4, PA)
    a("s_waitcnt lgkmcnt(8)"); mfma16(a, PA, AF+8, NFI, PA); mfma16(a, PA, AF+12, NFI+4, PA)
    a("s_waitcnt lgkmcnt(4)"); mfma16(a, QA, AF+16, FI); mfma16(a, QA, AF+20, FI+4, QA)
    a("s_waitcnt lgkmcnt(0)"); mfma16(a, QA, AF+24, FR, QA); mfma16(a, QA, AF+28, FR+4, QA)
    a(f"{lg}x:\ns_nop 7")
    MM, PP = 76, 80
    for r in range(4): a(f"v_sub_f32 v{MM+r}, v{PA+r}, v{QA+r}\nv_add_f32 v{PP+r}, v{PA+r}, v{QA+r}")
    a(f"v_cvt_pk_bf16_f32 v84, v{MM}, v{MM+1}\nv_cvt_pk_bf16_f32 v85, v{MM+2}, v{MM+3}\nv_cvt_pk_bf16_f32 v86, v{PP}, v{PP+1}\nv_cvt_pk_bf16_f32 v87, v{PP+2}, v{PP+3}")
    a(f"v_cvt_pk_bf16_f32 v88, v{MM+3}, v{MM+2}\nv_cvt_pk_bf16_f32 v89, v{MM+1}, v{MM}\nv_cvt_pk_bf16_f32 v90, v{PP+3}, v{PP+2}\nv_cvt_pk_bf16_f32 v91, v{PP+1}, v{PP}")
    a(f"ds_write_b64 v{vYW}, v[84:85]\nds_write_b64 v{vYW}, v[86:87] offset:4096\nds_write_b64 v{vYW+1}, v[90:91]\nds_write_b64 v{vYW+1}, v[88:89] offset:4096")
    a("s_waitcnt lgkmcnt(0)"); signal(a, C_Y, vSM, vOne)
    lz = L("z")
    a(f"s_or_b32 s{sT0}, s{sCL}, s{sTQ}\ns_cmp_lg_u32 s{sT0}, 0\ns_cbranch_scc1 {lz}")
    for j in range(4): a(f"v_mov_b32 v{NFI+j}, 0x3f803f80")
    mfma16(a, ZA, AF, NFI); mfma16(a, ZA, AF+4, NFI, ZA)
    a(f"s_lshl_b32 s{sT1}, s{sQ2}, 6\ns_lshl_b32 s{sT2}, s{sWV}, 4\ns_add_u32 s{sT1}, s{sT1}, s{sT2}\nv_lshrrev_b32 v1, 4, v0\nv_lshl_add_u32 v{vE0}, v1, 2, s{sT1}")
    a(f"s_mov_b32 s14, 0x00010001\ns_mov_b32 s15, 0x00010001\ns_movk_i32 s{sT1}, 220\ns_movk_i32 s{sT2}, 224")
    a(f"v_cmp_ge_u32 s[8:9], s{sT1}, v{vE0}\nv_cmp_lt_u32 vcc, 0, v{vE0}\ns_and_b64 s[8:9], s[8:9], s[14:15]\ns_and_b64 s[10:11], s[8:9], vcc\nv_cmp_eq_u32 s[12:13], s{sT2}, v{vE0}\ns_and_b64 s[12:13], s[12:13], s[14:15]")
    a(f"v_lshlrev_b32 v56, 1, v{vE0}\nv_sub_u32 v57, {2*445}, v56")
    a(f"v_cvt_pk_bf16_f32 v92, v{ZA}, v{ZA+1}\nv_cvt_pk_bf16_f32 v93, v{ZA+2}, v{ZA+3}\nv_cvt_pk_bf16_f32 v94, v{ZA+3}, v{ZA}\nv_cvt_pk_bf16_f32 v95, v{ZA+2}, v{ZA+1}")
    a(f"s_mov_b64 exec, s[8:9]\nbuffer_store_dwordx2 v[92:93], v56, {srd(S_OUT)}, 0 offen {OF_}\nbuffer_store_short v94, v57, {srd(S_OUT)}, 0 offen {OF_}\nbuffer_store_dword v95, v57, {srd(S_OUT)}, 0 offen offset:2 {OF_}")
    a(f"s_mov_b64 exec, s[10:11]\nbuffer_store_short_d16_hi v94, v57, {srd(S_OUT)}, 0 offen offset:6 {OF_}")
    a(f"s_mov_b64 exec, s[12:13]\nbuffer_store_short v92, v56, {srd(S_OUT)}, 0 offen {OF_}\ns_mov_b64 exec, -1")
    a(f"{lz}:")
    lwait(a, C_Y, vSM, vT)
    a(f"ds_read_b128 v[84:87], v{vYR}\nds_read_b128 v[88:91], v{vYR} offset:128")
    ly = L("y")
    a(f"s_cmp_eq_u32 s{sQ2}, 3\ns_cbranch_scc1 {ly}3\ns_waitcnt lgkmcnt(1)\nbuffer_store_dwordx4 v[84:87], v{vD}, {srd(S_OUT)}, 0 offen {OF_}")
    a(f"s_waitcnt lgkmcnt(0)\ns_cmp_eq_u32 s{sQ2}, 0\ns_cbranch_scc1 {ly}0\nbuffer_store_dwordx4 v[88:91], v{vM}, {srd(S_OUT)}, 0 offen {OF_}\ns_branch {ly}x")
    a(f"{ly}0:\ns_mov_b32 exec_lo, 0x7f7f7f7f\ns_mov_b32 exec_hi, 0x7f7f7f7f\nbuffer_store_dwordx4 v[88:91], v{vM}, {srd(S_OUT)}, 0 offen {OF_}")
    a(f"s_mov_b32 exec_lo, 0x80808080\ns_mov_b32 exec_hi, 0x80808080\nbuffer_store_dwordx3 v[88:90], v{vM}, {srd(S_OUT)}, 0 offen {OF_}\nbuffer_store_short v91, v{vM}, {srd(S_OUT)}, 0 offen offset:12 {OF_}\ns_branch {ly}x")
    a(f"{ly}3:\ns_waitcnt lgkmcnt(0)\ns_mov_b32 exec_lo, 0x0f0f0f0f\ns_mov_b32 exec_hi, 0x0f0f0f0f\nbuffer_store_dwordx4 v[84:87], v{vD}, {srd(S_OUT)}, 0 offen {OF_}")
    a(f"s_mov_b32 exec_lo, 0x10101010\ns_mov_b32 exec_hi, 0x10101010\nbuffer_store_short v84, v{vD}, {srd(S_OUT)}, 0 offen {OF_}")
    a(f"s_mov_b32 exec_lo, 0xf0f0f0f0\ns_mov_b32 exec_hi, 0xf0f0f0f0\nbuffer_store_dwordx4 v[88:91], v{vM}, {srd(S_OUT)}, 0 offen {OF_}")
    a(f"{ly}x:\ns_mov_b64 exec, -1")
    stamp(a, 'A', 'A2 done')
    stamps_out(a, 'A')
    a("s_endpgm")

def softmax(a, P, E, T, PHp, PHm):
    idx = [0,1,2,3,4,5,6,8,9,10,11,12,13,14]
    prs = [0,2,4,8,10,12]
    if OPT['mimic']:
        for k in range(7): a(f"v_cvt_pk_bf16_f32 v{E+k}, v{P+idx[2*k]}, v{P+idx[2*k+1]}")
        for k in range(7): a(f"v_lshlrev_b32 v{P+idx[2*k]}, 16, v{E+k}\nv_and_b32 v{P+idx[2*k+1]}, s{sMASK}, v{E+k}")
    mx, mn, t1, t2 = T, T+2, T+1, T+3
    a(f"v_max3_f32 v{mx}, v{P+idx[0]}, v{P+idx[1]}, v{P+idx[2]}\nv_min3_f32 v{mn}, v{P+idx[0]}, v{P+idx[1]}, v{P+idx[2]}")
    for k in range(3, 13, 2):
        a(f"v_max3_f32 v{mx}, v{mx}, v{P+idx[k]}, v{P+idx[k+1]}\nv_min3_f32 v{mn}, v{mn}, v{P+idx[k]}, v{P+idx[k+1]}")
    a(f"v_max_f32 v{mx}, v{mx}, v{P+idx[13]}\nv_min_f32 v{mn}, v{mn}, v{P+idx[13]}")
    a(f"v_mov_b32 v{t1}, v{mx}\nv_mov_b32 v{t2}, v{mn}")
    a(f"v_permlane32_swap_b32 v{mx}, v{t1}\nv_permlane32_swap_b32 v{mn}, v{t2}")
    a(f"v_max_f32 v{mx}, v{mx}, v{t1}\nv_min_f32 v{mn}, v{mn}, v{t2}")
    a(f"v_mul_f32 v{mx}, s{sNL}, v{mx}\nv_mul_f32 v{mn}, s{sL}, v{mn}")
    for i in prs:
        a(f"v_pk_fma_f32 v[{E+i}:{E+i+1}], v[{P+i}:{P+i+1}], s[{sL}:{sL+1}], v[{mx}:{mx+1}] op_sel_hi:[1,0,0]")
        a(f"v_pk_fma_f32 v[{P+i}:{P+i+1}], v[{P+i}:{P+i+1}], s[{sL}:{sL+1}], v[{mn}:{mn+1}] op_sel:[0,1,0] op_sel_hi:[1,1,0]")
    for i in (6, 14): a(f"v_fma_f32 v{E+i}, v{P+i}, s{sL}, v{mx}\nv_fma_f32 v{P+i}, v{P+i}, s{sNL}, v{mn}")
    for i in idx: a(f"v_exp_f32 v{E+i}, v{E+i}\nv_exp_f32 v{P+i}, v{P+i}")
    sp, sm = T+4, T+6
    a(f"v_pk_add_f32 v[{sp}:{sp+1}], v[{E}:{E+1}], v[{E+2}:{E+3}]\nv_pk_add_f32 v[{sm}:{sm+1}], v[{P}:{P+1}], v[{P+2}:{P+3}]")
    for i in prs[2:]: a(f"v_pk_add_f32 v[{sp}:{sp+1}], v[{sp}:{sp+1}], v[{E+i}:{E+i+1}]\nv_pk_add_f32 v[{sm}:{sm+1}], v[{sm}:{sm+1}], v[{P+i}:{P+i+1}]")
    a(f"v_add_f32 v{sp}, v{sp}, v{E+6}\nv_add_f32 v{sm}, v{sm}, v{P+6}\nv_add_f32 v{sp+1}, v{sp+1}, v{E+14}\nv_add_f32 v{sm+1}, v{sm+1}, v{P+14}")
    a(f"v_add_f32 v{sp}, v{sp}, v{sp+1}\nv_add_f32 v{sm}, v{sm}, v{sm+1}")
    a(f"v_mov_b32 v{t1}, v{sp}\nv_mov_b32 v{t2}, v{sm}")
    a(f"v_permlane32_swap_b32 v{sp}, v{t1}\nv_permlane32_swap_b32 v{sm}, v{t2}")
    a(f"v_add_f32 v{sp}, v{sp}, v{t1}\nv_add_f32 v{sm}, v{sm}, v{t2}")
    a(f"v_rcp_f32 v{sp}, v{sp}\nv_rcp_f32 v{sm}, v{sm}")
    for i in prs:
        a(f"v_pk_mul_f32 v[{E+i}:{E+i+1}], v[{E+i}:{E+i+1}], v[{sp}:{sp+1}] op_sel_hi:[1,0]")
        a(f"v_pk_mul_f32 v[{P+i}:{P+i+1}], v[{P+i}:{P+i+1}], v[{sm}:{sm+1}] op_sel_hi:[1,0]")
    for i in (6, 14): a(f"v_mul_f32 v{E+i}, v{E+i}, v{sp}\nv_mul_f32 v{P+i}, v{P+i}, v{sm}")
    for k in range(8):
        hi_e = f"v{E+2*k+1}" if (2*k+1) not in (7, 15) else "0"
        hi_p = f"v{P+2*k+1}" if (2*k+1) not in (7, 15) else "0"
        a(f"v_cvt_pk_bf16_f32 v{PHp+k}, v{E+2*k}, {hi_e}\nv_cvt_pk_bf16_f32 v{PHm+k}, v{P+2*k}, {hi_p}")

sPS, sPL, sOS, sOL, sOUT, sMS, sCG, sGO, sH1S, sH1, sH2S, sH2 = 92, 93, 94, 95, 96, 97, 3, 98, 99, 100, 101, 60
def SCALARS(a):
    a(f"s_lshl_b32 s{sPS}, s{sH}, 4\ns_add_u32 s{sPS}, s{sPS}, s{sRB}\ns_lshl_b32 s{sPS}, s{sPS}, 2\ns_add_u32 s{sPS}, s{sPS}, s{sWV}\ns_lshl_b32 s{sPS}, s{sPS}, 10\ns_add_u32 s{sPS}, s{sPS}, {W_KVP}")
    a(f"s_lshl_b32 s{sOS}, s{sRB}, 2\ns_add_u32 s{sOS}, s{sOS}, s{sWV}\ns_lshl_b32 s{sOS}, s{sOS}, 4\ns_add_u32 s{sOS}, s{sOS}, s{sH}")

    a(f"s_lshl_b32 s{sOS}, s{sOS}, 11\ns_add_u32 s{sOS}, s{sOS}, {W_O}")
    a(f"s_lshl_b32 s{sPL}, s{sH}, 16\ns_lshl_b32 s{sT0}, s{sWV}, 10\ns_add_u32 s{sPL}, s{sPL}, s{sT0}\ns_add_u32 s{sPL}, s{sPL}, {W_KVP}")
    a(f"s_lshl_b32 s{sT1}, s{sXCD}, 2\ns_lshr_b32 s{sT0}, s{sI}, 3\ns_add_u32 s{sT1}, s{sT1}, s{sT0}")
    a(f"s_lshl_b32 s{sOL}, s{sT1}, 2\ns_add_u32 s{sOL}, s{sOL}, s{sWV}\ns_lshl_b32 s{sOL}, s{sOL}, 14\ns_add_u32 s{sOL}, s{sOL}, {W_O}")
    a(f"s_lshl_b32 s{sT1}, s{sT1}, 1\ns_lshr_b32 s{sT0}, s{sWV}, 1\ns_add_u32 s{sT1}, s{sT1}, s{sT0}\ns_mul_i32 s{sOUT}, s{sT1}, {32*1792}")
    a(f"s_and_b32 s{sCG}, s{sI}, 7\ns_lshl_b32 s{sT1}, s{sCG}, 1\ns_and_b32 s{sT0}, s{sWV}, 1\ns_add_u32 s{sT1}, s{sT1}, s{sT0}\ns_lshl_b32 s{sT1}, s{sT1}, 6\ns_add_u32 s{sOUT}, s{sOUT}, s{sT1}\ns_add_u32 s{sOUT}, s{sOUT}, 896")

def gen_B(a):
    a("LB:")
    PF = OPT.get('pf2', 1)
    a(f"s_getpc_b64 s[4:5]")
    l = L("pc"); a(f"{l}:")
    a(f"s_sub_u32 s4, s4, {l}-{NAME}_kernel\ns_subb_u32 s5, s5, 0")
    a(f"s_lshl_b32 s{sT0}, s{sWV}, 13\nv_lshl_add_u32 v1, v0, 7, s{sT0}\nv_min_u32 v1, LTAB-{NAME}_kernel+{T_END}-4, v1")
    if PF == 0: a(f"global_load_dword v252, v1, s[4:5]")
    a(f"v_lshlrev_b32 v9, 4, v0\ns_and_b32 s{sT0}, s{sWV}, 1\ns_lshl_b32 s{sT0}, s{sT0}, 10\ns_add_u32 m0, s{sT0}, {PHI}\ns_mul_i32 s60, s{sH}, 1568\ns_add_u32 s60, s60, s{sT0}")
    a("s_waitcnt lgkmcnt(0)")
    if PF >= 1:
        lt = L("tt")
        a(f"s_and_b32 s{sT1}, s{sI}, 15\ns_cmp_eq_u32 s{sT1}, 0\ns_cbranch_scc1 {lt}g\ns_cmp_lg_u32 s{sWV}, 0\ns_cbranch_scc1 {lt}x\ns_cmp_gt_u32 s{sT1}, 10\ns_cbranch_scc1 {lt}x")
        a(f"s_mov_b32 s4, s30\ns_mov_b32 s5, s31\ns_sub_u32 s{sT2}, s{sT1}, 7")
        a(f"s_cmp_lt_u32 s{sT1}, 7\ns_cselect_b32 s4, s26, s4\ns_cselect_b32 s5, s27, s5\ns_cselect_b32 s{sT3}, 2, 0\ns_add_u32 s{sT2}, s{sT2}, s{sT3}")
        a(f"s_cmp_lt_u32 s{sT1}, 5\ns_cselect_b32 s4, s28, s4\ns_cselect_b32 s5, s29, s5\ns_cselect_b32 s{sT2}, 0, s{sT2}")
        for j, p in ((3, 22), (2, 24), (1, 8)):
            a(f"s_cmp_eq_u32 s{sT1}, {j}\ns_cselect_b32 s4, s{p}, s4\ns_cselect_b32 s5, s{p+1}, s5")
        a(f"s_mul_i32 s{sT2}, s{sT2}, 0x200c00\ns_and_b32 s{sT2}, s{sT2}, 0xfffff000\ns_add_u32 s{sT2}, s{sT2}, 0x80\nv_mov_b32 v1, s{sT2}")
        a(f"{lt}g:")
        if PF == 2: a(f"s_cmp_eq_u32 s{sT1}, 0\ns_cbranch_scc1 {lt}x")
        a(f"global_load_dword v252, v1, s[4:5]\n{lt}x:")
    mk_srd(a, S_PHI, 22, 16*1568)
    if PF == 0: a(f"buffer_load_dwordx4 v9, {srd(S_PHI)}, s60 offen lds")
    if OPT['stamps']:
        a(f"v_mov_b32 v{STV}, 0\nv_writelane_b32 v{STV}, s{ST0+2}, 0"); nst['B'] = 1
    vL16, vSM, vOne, vT, vT2, vNon = 9, 10, 11, 12, 13, 14
    aX0, aW0 = 2, 6
    AK, AV, WF, PHIF, X = 16, 32, 48, 80, 128
    ASEL, WOR, DM = 96, 100, 104
    vTag, vZ, vAcc = 107, 108, 109
    a(f"v_mov_b32 v{vZ}, 0")
    a(f"s_mov_b32 s{sL}, 0x3fb8aa3b\ns_mov_b32 s{sNL}, 0xbfb8aa3b\ns_mov_b32 s{sMASK}, 0xffff0000\ns_mov_b32 s{sLO}, 0xffff")
    vR, vHH = 7, 8
    a(f"v_and_b32 v{vR}, 31, v0\nv_lshrrev_b32 v{vHH}, 5, v0\nv_bfe_u32 v{vT}, v0, 1, 3")
    a(f"s_lshl_b32 s{sT0}, s{sWV}, 12\ns_add_u32 s{sT0}, s{sT0}, {XR0}")
    a(f"v_xor_b32 v{vT2}, v{vT}, v{vHH}\nv_lshlrev_b32 v{vT2}, 4, v{vT2}\nv_lshl_add_u32 v{vT2}, v{vR}, 7, v{vT2}\nv_add_u32 v{vT2}, s{sT0}, v{vT2}")
    for ks in range(4): a(f"v_xor_b32 v{aX0+ks}, {32*ks}, v{vT2}")
    aKW, aKA, aKB = 112, 116, 118
    a(f"s_lshl_b32 s{sT0}, s{sWV}, 12\ns_add_u32 s{sT0}, s{sT0}, {KVX}")
    a(f"v_xor_b32 v{vT2}, v{vT}, v{vHH}\nv_lshlrev_b32 v{vT2}, 3, v{vT2}\nv_lshl_add_u32 v{vT2}, v{vR}, 6, v{vT2}\nv_add_u32 v{vT2}, s{sT0}, v{vT2}")
    for k in range(4): a(f"v_xor_b32 v{aKW+k}, {16*k}, v{vT2}")
    vG, vR4, vCC = 122, 123, 124
    a(f"v_lshrrev_b32 v{vG}, 4, v0\nv_bfe_u32 v{vR4}, v0, 2, 2\nv_and_b32 v{vCC}, 3, v0")
    a(f"v_lshl_add_u32 v{vT2}, v{vHH}, 3, v{vR4}\nv_lshlrev_b32 v{vT2}, 6, v{vT2}\nv_lshl_add_u32 v{vT2}, v{vCC}, 3, v{vT2}\nv_and_b32 v{vT}, 1, v{vG}\nv_lshl_add_u32 v{aW0}, v{vT}, 5, v{vT2}")
    a(f"v_lshlrev_b32 v{vT}, 2, v{vT}\nv_lshrrev_b32 v{vT2}, 1, v{vR4}\nv_add_u32 v{vT}, v{vT}, v{vT2}\nv_xor_b32 v{vT}, v{vT}, v{vCC}\nv_lshlrev_b32 v{vT}, 3, v{vT}")
    a(f"v_lshl_add_u32 v{vT2}, v{vG}, 3, v{vR4}\nv_lshl_add_u32 v{vT}, v{vT2}, 6, v{vT}")
    a(f"v_add_u32 v{aKB}, {KVX+16384}, v{vT}\nv_add_u32 v{aKB+1}, 256, v{aKB}\nv_xor_b32 v{aKB+1}, 16, v{aKB+1}\nv_xor_b32 v{aKB+2}, 32, v{aKB}\nv_xor_b32 v{aKB+3}, 32, v{aKB+1}")
    a(f"s_and_b32 s{sT0}, s{sWV}, 1\ns_lshl_b32 s{sT0}, s{sT0}, 5\ns_lshr_b32 s{sT1}, s{sWV}, 1\ns_lshl_b32 s{sT1}, s{sT1}, 11\ns_sub_u32 s{sT1}, 16384, s{sT1}")
    for sec in range(2): a(f"v_xor_b32 v{aKA+sec}, s{sT0}, v{aKB+sec}\nv_subrev_u32 v{aKA+sec}, s{sT1}, v{aKA+sec}")
    vPS, vPL, vKFW, vKFR = 125, 126, 127, 105
    a(f"v_and_b32 v{vT}, 15, v0\nv_lshlrev_b32 v{vT}, 4, v{vT}\nv_and_b32 v{vT2}, 1, v{vG}\nv_lshl_add_u32 v{vT}, v{vT2}, 9, v{vT}")
    a(f"v_lshl_add_u32 v{vPS}, v{vHH}, 8, v{vT}\nv_lshl_add_u32 v{vPL}, v{vHH}, 12, v{vT}\nv_lshl_add_u32 v{vKFW}, v{vHH}, 3, v{vT}")
    a(f"s_lshl_b32 s{sT0}, s{sWV}, 10\ns_add_u32 s{sT0}, s{sT0}, {KVF}\nv_add_u32 v{vKFW}, s{sT0}, v{vKFW}")
    mk_srd(a, S_WS, 30, 0x10000000); mk_srd(a, S_OUT, 26, 2048*1792)
    SCALARS(a)
    def xread(c):
        for ks in range(4):
            a(f"ds_read_b128 v[{X+16*c+4*ks}:{X+16*c+4*ks+3}], v{aX0+ks} offset:{(c % 4)*SLOT}")
    a(f"v_lshrrev_b32 v{vT}, 4, v{vR}\nv_and_b32 v{vT2}, 15, v0\nv_add_u32 v{vT2}, 4, v{vT2}\nv_lshrrev_b32 v{vT2}, 4, v{vT2}\nv_lshl_add_u32 v{vT2}, v{vT}, 1, v{vT2}\nv_sub_u32 v{DM}, v{vR}, v{vT2}")
    a(f"v_and_b32 v{vT2}, 11, v0\nv_add_u32 v{vT}, 28, v{vT}\nv_cmp_eq_u32 vcc, 11, v{vT2}\nv_cndmask_b32 v{DM}, v{DM}, v{vT}, vcc")
    a(f"v_lshl_add_u32 v{WOR}, v{vHH}, 2, v{vR4}\nv_sub_u32 v{vT}, v{WOR}, v{vHH}\nv_add_u32 v{WOR+1}, 8, v{vT}\nv_add_u32 v{WOR+2}, 14, v{WOR}\nv_add_u32 v{WOR+3}, 22, v{vT}\nv_min_u32 v{WOR+3}, 27, v{WOR+3}")
    a(f"v_lshlrev_b32 v{vKFR}, 4, v{DM}\nv_lshl_add_u32 v{vKFR}, v{vHH}, 9, v{vKFR}\nv_add_u32 v{vKFR}, {KVF}, v{vKFR}")
    a(f"v_and_b32 v{vT2}, 1, v{vG}\nv_lshlrev_b32 v{vT2}, 5, v{vT2}\nv_lshl_add_u32 v{vT2}, v{vCC}, 3, v{vT2}")
    a(f"s_and_b32 s{sT0}, s{sWV}, 1\nv_add_u32 v{vT2}, {WOA}, v{vT2}")
    for k in range(4):
        a(f"v_bfe_u32 v{vT}, v{WOR+k}, 1, 1\nv_xor_b32 v{vT}, s{sT0}, v{vT}\nv_lshl_add_u32 v{vT}, v{vT}, 6, v{vT2}\nv_lshl_add_u32 v{WOR+k}, v{WOR+k}, 7, v{vT}")
    aPH = 106
    a(f"v_min_u32 v{vT}, 27, v{DM}\nv_mul_u32_u24 v{vT2}, 224, v{vHH}\nv_lshl_add_u32 v{aPH}, v{vT}, 1, v{vT2}\nv_add_u32 v{aPH}, {PHI}, v{aPH}")
    AT = 88
    if PF == 0: a(f"s_waitcnt vmcnt(0)")
    if OPT['prio']: a(f"s_setprio {OPT['prio']}")
    if OPT['lst']: stamp(a, 'B', 'setup')
    lq = []
    def lwait_tag(tag):
        if tag not in lq: return
        idx = max(i for i, t in enumerate(lq) if t == tag)
        a(f"s_waitcnt lgkmcnt({min(15, len(lq)-1-idx)})")
        del lq[:idx+1]
    for c in range(7):
        a("s_barrier")
        for ks in range(4):
            a(f"ds_read_b128 v[{X+16*c+4*ks}:{X+16*c+4*ks+3}], v{aX0+ks} offset:{(c % 4)*SLOT}")
            for sg in range(2):
                for sec in range(2):
                    r = WF + 8*ks + 4*sg + 2*sec
                    a(f"ds_read_b64_tr_b16 v[{r}:{r+1}], v{aW0} offset:{WKV + c*8192 + sg*4096 + ks*1024 + sec*256}")
            lq.extend([f"k{ks}"]*5)
        if c == 6: a(f"ds_read_b32 v{vNon}, v{vSM} offset:{NONCE}"); lq.append("non")
        for ks in range(4):
            n = 4*c + ks
            lwait_tag(f"k{ks}")
            if n == 27: signal(a, C_G, vSM, vOne)
            mfma32(a, AK, WF+8*ks, X+4*n, AK if n else None)
            mfma32(a, AV, WF+8*ks+4, X+4*n, AV if n else None)
        if PF and c == 0: a(f"buffer_load_dwordx4 v9, {srd(S_PHI)}, s60 offen lds")
        if PF and c == 3: a("s_waitcnt vmcnt(0)")
        if c == (4 if PF else 0):
            for i in range(2):
                for jj in range(8):
                    a(f"ds_read_u16 v{240+8*i+jj}, v{aPH} offset:{(16*i + (jj & 3) + 8*(jj >> 2))*56}")
            a("s_waitcnt lgkmcnt(0)")
            for k in range(8): a(f"v_lshl_or_b32 v{PHIF+k}, v{241+2*k}, 16, v{240+2*k}")
            a(f"s_mov_b32 exec_lo, 0\nv_mov_b32 v{PHIF+6}, 0\nv_mov_b32 v{PHIF+7}, 0\ns_mov_b32 exec_lo, -1")
    a(f"s_waitcnt lgkmcnt(1)\ns_mov_b32 s{sT0}, 0x9e3779b1\nv_mul_lo_u32 v{vT}, v{vNon}, s{sT0}\nv_cmp_lt_u32 vcc, 1, v{vCC}\nv_and_b32 v{vT2}, 1, v0\nv_lshlrev_b32 v{vT2}, 4, v{vT2}\nv_cndmask_b32 v{vT}, v{vNon}, v{vT}, vcc")
    a(f"v_xor_b32 v{vT2}, 16, v{vT2}\nv_lshlrev_b32 v{vT}, v{vT2}, v{vT}\nv_and_b32 v{vTag}, 0xbfff0000, v{vT}")
    stamp(a, 'B', 'gemm')
    if OPT.get('trunc'):
        stamps_out(a, 'B'); return
    KB = 48; VB = 56; E = 64; T = 88
    for j in range(8): a(f"v_cvt_pk_bf16_f32 v{KB+j}, v{AK+2*j}, v{AK+2*j+1}")
    mfma32(a, AK, PHIF, KB, None); mfma32(a, AK, PHIF+4, KB+4, AK)
    for j in range(8): a(f"v_cvt_pk_bf16_f32 v{VB+j}, v{AV+2*j}, v{AV+2*j+1}")
    a(f"s_mov_b32 exec_lo, 0\nv_mov_b32 v{VB+6}, 0x3f80\nv_mov_b32 v{VB+7}, 0\ns_mov_b32 exec_lo, -1")
    for k in range(4): a(f"ds_write_b64 v{aKW+k}, v[{VB+2*k}:{VB+2*k+1}] offset:16384")
    softmax(a, AK, E, T, 32, 40)
    for k in range(4):
        a(f"ds_write_b64 v{aKW+k}, v[{32+2*k}:{33+2*k}]\nds_write_b64 v{aKW+k}, v[{40+2*k}:{41+2*k}] offset:2048")
    a("s_waitcnt lgkmcnt(0)"); signal(a, C_B1, vSM, vOne)
    lwait(a, C_B1, vSM, vT)
    stamp(a, 'B', 'phik sync')
    FA, FB = 32, 48
    for ks in range(4):
        for sec in range(2): a(f"ds_read_b64_tr_b16 v[{FA+4*ks+2*sec}:{FA+4*ks+2*sec+1}], v{aKA+sec} offset:{4096*ks}")
        for dt in range(2):
            for sec in range(2):
                r = FB + 16*dt + 4*ks + 2*sec
                a(f"ds_read_b64_tr_b16 v[{r}:{r+1}], v{aKB+2*dt+sec} offset:{4096*ks}")
        if ks >= 2:
            k2 = ks - 2
            a(f"s_waitcnt lgkmcnt(12)")
            for dt in range(2): mfma16(a, 16+4*dt, FA+4*k2, FB+16*dt+4*k2, 16+4*dt if k2 else None)
    for k2 in (2, 3):
        a(f"s_waitcnt lgkmcnt({6*(3-k2)})")
        for dt in range(2): mfma16(a, 16+4*dt, FA+4*k2, FB+16*dt+4*k2, 16+4*dt)
    a(f"ds_read_b32 v{vT2}, v{vSM} offset:{C_WQ}")
    a(f"v_add_u32 v{AT}, {WQ}, v{aW0}")
    a(f"v_cvt_pk_bf16_f32 v24, v16, v17\nv_cvt_pk_bf16_f32 v25, v18, v19\nv_cvt_pk_bf16_f32 v26, v20, v21\nv_cvt_pk_bf16_f32 v27, v22, v23")
    a("v_permlane32_swap_b32 v24, v26\nv_permlane32_swap_b32 v25, v27")
    a(f"v_bfi_b32 v27, s{sLO}, v27, v{vTag}")
    a(f"buffer_store_dwordx4 v[24:27], v{vPS}, {srd(S_WS)}, s{sPS} offen sc1")
    stamp(a, 'B', 'partial out')
    lq = L("wq")
    a(f"s_waitcnt lgkmcnt(0)\nv_readfirstlane_b32 s{sT0}, v{vT2}\ns_cmp_ge_u32 s{sT0}, 4\ns_cbranch_scc1 {lq}")
    lwait(a, C_WQ, vSM, vT2)
    a(f"{lq}:")
    AQ = 32
    NB = 6
    def wq_read(n):
        r = WF + 4*(n % 8)
        for sec in range(2): a(f"ds_read_b64_tr_b16 v[{r+2*sec}:{r+2*sec+1}], v{AT} offset:{n*1024+sec*256}")
    vH, vHA = 110, 111
    for n in range(NB): wq_read(n)
    for n in range(28):
        a(f"s_waitcnt lgkmcnt({2*min(NB-1, 27-n)})")
        mfma32(a, AQ, WF+4*(n % 8), X+4*n, AQ if n else None)
        if n + NB < 28: wq_read(n + NB)
        if n == OPT.get('qh', 27): signal(a, C_QH, vSM, vOne)
    PHQp = 112; PHQm = 80
    for j in range(8): a(f"v_cvt_pk_bf16_f32 v{KB+j}, v{AQ+2*j}, v{AQ+2*j+1}")
    mfma32(a, AK, PHIF, KB, None); mfma32(a, AK, PHIF+4, KB+4, AK)
    stamp(a, 'B', 'q gemm')
    softmax(a, AK, E, T, PHQp, PHQm)
    stamp(a, 'B', 'phiq')
    lwait(a, C_B2, vSM, vT)
    stamp(a, 'B', 'kv sync')
    for p in range(4): a(f"ds_read_b128 v[{48+4*p}:{51+4*p}], v{vKFR} offset:{1024*p}")
    N = 16
    for p in range(4):
        a(f"s_waitcnt lgkmcnt({3-p})")
        mfma32(a, N, 48+4*p, (PHQp if p < 2 else PHQm) + 4*(p & 1), N if p else None)
    a(f"ds_read_b32 v{vT2}, v{vSM} offset:{C_WO}")
    a(f"v_add_f32 v{T}, 0x358637bd, v{N+7}\nv_rcp_f32 v{T}, v{T}")
    for i in [0,2,4,8,10,12]: a(f"v_pk_mul_f32 v[{N+i}:{N+i+1}], v[{N+i}:{N+i+1}], v[{T}:{T+1}] op_sel_hi:[1,0]")
    for i in (6, 14): a(f"v_mul_f32 v{N+i}, v{N+i}, v{T}")
    for k in range(8):
        hi = f"v{N+2*k+1}" if (2*k+1) not in (7, 15) else "0"
        a(f"v_cvt_pk_bf16_f32 v{32+k}, v{N+2*k}, {hi}")
        if k in (3, 7):
            a(f"v_or_b32 v{32+k}, v{32+k}, v{vTag}")
            a(f"buffer_store_dwordx4 v[{29+k}:{32+k}], v{vL16}, {srd(S_WS)}, s{sOS} offen offset:{1024*(k>>2)} sc1")
    stamp(a, 'B', 'o out')
    lx = L("idle")
    a(f"s_cmp_lg_u32 s{sCG}, 7\ns_cbranch_scc1 {lx}")
    a(f"s_sleep {OPT.get('be', 24) + 30}")
    signal(a, C_O, vSM, vOne); signal(a, C_WOR, vSM, vOne); signal(a, C_B3, vSM, vOne)
    a(f"s_branch LBX\n{lx}:")
    WOF = 128; OL = 16
    def wo_reads(hs, delta):
        for h2 in hs:
            off = wobase(h2) - delta
            assert 0 <= off < 65536
            for i in range(2):
                for sec in range(2):
                    r = WOF + 8*h2 + 4*i + 2*sec
                    a(f"ds_read_b64_tr_b16 v[{r}:{r+1}], v{WOR+2*i+sec} offset:{off}")
    lq = L("wo")
    a(f"s_waitcnt lgkmcnt(0)\nv_readfirstlane_b32 s{sT0}, v{vT2}\ns_cmp_ge_u32 s{sT0}, 4\ns_cbranch_scc1 {lq}")
    lwait(a, C_WO, vSM, vT)
    a(f"{lq}:")
    G2 = Gather(a, 8, 2, lambda p: OL + 8*p, lambda p: o_issue(p), lambda p: o_consume(p), vH, vHA, None, vNon, vAcc, vTag, sLO, sMS, sGO, 22)
    wo_reads(range(8), WOA)
    for k in range(4): a(f"v_add_u32 v{WOR+k}, {WOB-WOA}, v{WOR+k}")
    wo_reads(range(8, 16), WOB)
    vO, vOW, vOX, vOR, vORX = 88, 89, 90, 91, 92
    a(f"v_mul_u32_u24 v{vO}, 1792, v{vR}\nv_lshl_add_u32 v{vO}, v{vHH}, 4, v{vO}")
    a(f"s_cmp_lt_u32 s{sWV}, 2\ns_cselect_b32 s{sT1}, {OB0}, {OB1}\ns_cselect_b32 s{sT2}, 0, {OB1X - 28*1024 - OB1}")
    a(f"v_add_u32 v{vOR}, s{sT1}, v{vL16}\nv_add_u32 v{vORX}, s{sT2}, v{vOR}")
    a(f"s_and_b32 s{sT0}, s{sWV}, 1\ns_lshl_b32 s{sT1}, s{sT0}, 14\ns_mul_i32 s{sT2}, s{sT2}, s{sT0}\nv_add_u32 v{vOW}, s{sT1}, v{vOR}\nv_add_u32 v{vOX}, s{sT2}, v{vOW}")
    a("s_waitcnt lgkmcnt(0)"); signal(a, C_WOR, vSM, vOne)
    stamp(a, 'B', 'wo frags')
    def o_issue(p):
        if not p & 1: a(f"s_add_u32 s{sT4}, s{sOL}, {2048*p}")
        else: a(f"s_add_u32 s{sT4}, s{sOL}, {2048*(p-1)}")
        for k in range(2):
            r = OL + 8*p + 4*k
            a(f"buffer_load_dwordx4 v[{r}:{r+3}], v{vL16}, {srd(S_WS)}, s{sT4} offen offset:{2048*(p&1)+1024*k} sc1")
    def o_consume(p):
        for k in range(2):
            r = OL + 8*p + 4*k
            a(f"v_and_b32 v{r+3}, s{sLO}, v{r+3}\nds_write_b128 v{vOX if p >= 6 else vOW}, v[{r}:{r+3}] offset:{2048*p+1024*k}")
    def backoff(early, late):
        lb = L("bo")
        a(f"s_lshr_b32 s{sT0}, 0xaa54, s{sH}\ns_bitcmp1_b32 s{sT0}, 0\ns_cbranch_scc1 {lb}")
        if early > late: a(f"s_sleep {early - late}")
        a(f"{lb}:")
        if late: a(f"s_sleep {late}")
    backoff(OPT.get('be1', 8), 0)
    l2 = L("h2")
    a(f"s_bitcmp1_b32 s{sWV}, 0\ns_cbranch_scc1 {l2}o")
    for par in range(2):
        late = [p for p in range(8) if (0xaa54 >> (8*par + p)) & 1 or OPT.get('one', 1)]
        order = [p for p in range(8) if p not in late] + late
        for n_, p in enumerate(order):
            if n_ == 8 - len(late):
                if par == 0: stamp(a, 'B', 'o asked 1')
                backoff(OPT.get('be', 24), OPT.get('bl', 0))
            o_issue(p)
        signal(a, C_O, vSM, vOne)
        if par == 0: stamp(a, 'B', 'o asked 2')
        for n_, p in enumerate(order):
            r = OL + 8*p
            a(f"s_waitcnt vmcnt({2*(7-n_)})")
            if n_ == 0: a(f"v_bitop3_b32 v{vAcc}, v{r+3}, v{r+7}, v{vTag} bitop3:0x7e")
            else: a(f"v_bitop3_b32 v{vAcc}, v{vAcc}, v{r+3}, v{vTag} bitop3:0xf6\nv_bitop3_b32 v{vAcc}, v{vAcc}, v{r+7}, v{vTag} bitop3:0xf6")
            for k in range(2):
                rr = r + 4*k
                a(f"v_xor_b32 v{rr+3}, v{vTag}, v{rr+3}\nds_write_b128 v{vOX if p >= 6 else vOW}, v[{rr}:{rr+3}] offset:{2048*p+1024*k}")
        if par == 0: a(f"s_branch {l2}j\n{l2}o:")
    a(f"{l2}j:\nv_cmp_lt_u32 vcc, s{sLO}, v{vAcc}\ns_cbranch_vccz {l2}x")
    a("s_waitcnt lgkmcnt(0)")
    for q_ in range(16): a(f"v_xor_b32 v{OL+4*q_+3}, v{vTag}, v{OL+4*q_+3}")
    a(f"s_mov_b32 s{sMS}, 0xff\ns_mov_b32 s{sGO}, 0xff")
    G2.take(l2 + "u", False)
    G2.l = l2
    G2.retry()
    a("s_waitcnt lgkmcnt(0)"); signal(a, C_B3, vSM, vOne)
    lwait(a, C_B3, vSM, vT)
    stamp(a, 'B', 'o sync')
    OF = 48; NR = 8
    def o_read(n): a(f"ds_read_b128 v[{OF+4*(n%NR)}:{OF+4*(n%NR)+3}], v{vORX if n >= 28 else vOR} offset:{1024*n}")
    for n in range(NR): o_read(n)
    for n in range(32):
        a(f"s_waitcnt lgkmcnt({min(NR-1, 31-n)})")
        mfma32(a, 16, WOF+4*n, OF+4*(n % NR), 16 if n else None)
        if n + NR < 32: o_read(n + NR)
    for j in range(8): a(f"v_cvt_pk_bf16_f32 v{32+j}, v{16+2*j}, v{17+2*j}")
    a("v_permlane32_swap_b32 v32, v34\nv_permlane32_swap_b32 v33, v35\nv_permlane32_swap_b32 v36, v38\nv_permlane32_swap_b32 v37, v39")
    a(f"buffer_store_dwordx4 v[32:35], v{vO}, {srd(S_OUT)}, s{sOUT} offen {OF_}")
    a(f"buffer_store_dwordx4 v[36:39], v{vO}, {srd(S_OUT)}, s{sOUT} offen offset:32 {OF_}")
    a("LBX:")
    stamp(a, 'B', 'end')
    stamps_out(a, 'B')

a = Asm()
prologue(a)
gen_A(a)
gen_B(a)
a("LEND:\ns_endpgm")
text = hz.fix(a.text())
tab, tn = tables()
text += "\n.p2align 8\nLTAB:\n" + tab + "\n"
src = make_file([(NAME+"_kernel", 256, 512, LDS_BYTES)], {NAME+"_kernel": (text, 256, 102, 256)}, single=True)
open(sys.argv[1], "w").write(src)
if OPT['stamps']:
    open(sys.argv[1] + ".names", "w").write("\n".join(names['B'] + ['']*(NSTAMP-len(names['B'])) + names['A'] + ['']*(NSTAMP-len(names['A']))))
print("stamps B", nst['B'], "A", nst['A'], "table bytes", tn, "src bytes", len(src))
```
